```python
import torch

def _softmax(x, axis=-1):
    return torch.softmax(x, dim=axis)
def _gelu(x):
    return torch.nn.functional.gelu(x, approximate="tanh")
def _silu(x):
    return torch.nn.functional.silu(x)
def _sigmoid(x):
    return torch.sigmoid(x)
def _layernorm(x, axis=-1, eps=1e-5):
    m = x.mean(dim=axis, keepdim=True)
    v = x.var(dim=axis, keepdim=True, unbiased=False)
    return (x - m) / torch.sqrt(v + eps)
def _scatter_add(tgt, idx, src, axis=0):
    return tgt.clone().index_add_(axis, idx, src)
def _segment_sum(src, seg, n):
    out = torch.zeros((n,) + src.shape[1:], dtype=src.dtype)
    return out.index_add_(0, seg, src)
def _pad(x, pw):
    flat = tuple(v for pair in reversed(pw) for v in pair)
    return torch.nn.functional.pad(x, flat)

kernel_name = 'recurrent_scan__spectral_gfnet__moe_arch_mod__prompt'

def setup_inputs():

    _w = (lambda a: (lambda t: t.to(torch.bfloat16) if t.is_floating_point() else t)(torch.as_tensor(a)))
    def _A_setup():
        B, S, D = 1, 2048, 1024
        Df = D // 2 + 1
        return {
            "x": _w((lambda *s: torch.randn(*s, dtype=torch.bfloat16) * 0.05)(B, S, D)),
            "w_r": _w((lambda *s: torch.randn(*s, dtype=torch.bfloat16) * 0.05)(S, Df) * 0.02),
            "w_i": _w((lambda *s: torch.randn(*s, dtype=torch.bfloat16) * 0.05)(S, Df) * 0.02),
        }
    _A_in = _A_setup()

    def _B_setup():
        B, S, D, F, C = 1, 2048, 1024, 3584, 1
        return {
            "x": _w((lambda *s: torch.randn(*s, dtype=torch.bfloat16) * 0.05)(B, S, D)),
            "w_r": _w((lambda *s: torch.randn(*s, dtype=torch.bfloat16) * 1.6)(D)),
            "w_gate": _w((lambda *s: torch.randn(*s, dtype=torch.bfloat16) * 0.1)(D, F)),
            "w_up": _w((lambda *s: torch.randn(*s, dtype=torch.bfloat16) * 0.1)(D, F)),
            "w_down": _w((lambda *s: torch.randn(*s, dtype=torch.bfloat16) * 0.1)(F, D)),
        }
    _B_in = _B_setup()

    return {
        "A_x": _A_in["x"],
        "A_w_r": _A_in["w_r"],
        "A_w_i": _A_in["w_i"],
        "B_x": _B_in["x"],
        "B_w_r": _B_in["w_r"],
        "B_w_gate": _B_in["w_gate"],
        "B_w_up": _B_in["w_up"],
        "B_w_down": _B_in["w_down"],
    }

def reference(A_x, A_w_r, A_w_i, B_x, B_w_r, B_w_gate, B_w_up, B_w_down):
    def _A_ref(x, w_r, w_i):
        B, S, D = x.shape
        X = (lambda x, axes=(-2,-1): torch.fft.rfft2(x.float(), dim=axes))(x, axes=(-2, -1))
        W = w_r + 1j * w_i
        X = X * W
        y = (lambda x, s, axes=(-2,-1): torch.fft.irfft2(x, s=s, dim=axes).to(torch.bfloat16))(X, (S, D), axes=(-2, -1))
        return y

    def _B_ref(x, w_r, w_gate, w_up, w_down):
        B, S, D = x.shape
        C = 1
        r = x @ w_r
        idx = torch.argsort(-r, axis=-1)[:, :C]
        idx_e = (lambda x, n, axis: torch.repeat_interleave(x, n, dim=axis))(idx.reshape(B, C, 1), D, axis=2)
        x_sel = (lambda x, i, axis: torch.take_along_dim(x, i, dim=axis))(x, idx_e, axis=1)
        g = _silu(x_sel @ w_gate)
        u = x_sel @ w_up
        y = (g * u) @ w_down
        r_sel = _sigmoid((lambda x, i, axis: torch.take_along_dim(x, i, dim=axis))(r, idx, axis=1))
        y = y * r_sel.reshape(B, C, 1)
        b_off = (torch.arange(B) * S).reshape(B, 1)
        flat_idx = (idx + b_off).reshape(B * C)
        zero = (x * 0.0).reshape(B * S, D)
        upd = _scatter_add(zero, flat_idx, y.reshape(B * C, D), axis=0)
        return x + upd.reshape(B, S, D)

    x = A_x
    xn = _layernorm(x, axis=-1)
    s = _A_ref(xn, A_w_r, A_w_i)
    g = _silu(_B_ref(xn, B_w_r, B_w_gate, B_w_up, B_w_down))
    return x + s * g
```

```python
import re

def _expand(tok):
    tok = tok.strip()
    neg = tok.startswith('-')
    if neg: tok = tok[1:]
    if tok.startswith('abs(') or tok.startswith('|'):
        tok = tok.strip('|')
        tok = tok[4:-1] if tok.startswith('abs(') else tok
    m = re.fullmatch(r'([vs])(\d+)', tok)
    if m: return [(m.group(1), int(m.group(2)))]
    m = re.fullmatch(r'([vs])\[(\d+):(\d+)\]', tok)
    if m: return [(m.group(1), k) for k in range(int(m.group(2)), int(m.group(3))+1)]
    if tok == 'vcc': return [('s', 'vcc')]
    if tok == 'exec': return [('s', 'exec')]
    if tok == 'm0': return [('s', 'm0')]
    return []

TRANS = ('v_exp_f32', 'v_log_f32', 'v_rcp_f32', 'v_rsq_f32', 'v_sqrt_f32', 'v_sin_f32', 'v_cos_f32')

class Ins:
    __slots__ = ('text', 'op', 'kind', 'dst', 'src', 'passes', 'isdpp', 'lds_dma', 'wide_store', 'srcC', 'note', 'srcAB')
    def __init__(self, text):
        self.text = text
        t = text.split(';')[0].strip()
        parts = t.split(None, 1)
        self.op = parts[0]
        rest = parts[1] if len(parts) > 1 else ''
        ops = [o.strip() for o in re.split(r',(?![^\[]*\])', rest)] if rest else []
        mods = ''
        if ops:
            last = ops[-1].split(None, 1)
            ops[-1] = last[0]
            if len(last) > 1: mods = last[1]
        op = self.op
        self.dst = []; self.src = []; self.passes = 0; self.isdpp = False
        self.lds_dma = False; self.wide_store = False; self.srcC = []
        R = lambda i: _expand(ops[i]) if i < len(ops) else []
        allsrc = lambda a: [r for i in range(a, len(ops)) for r in _expand(ops[i])]
        if op.startswith('v_mfma'):
            self.kind = 'mfma'
            self.dst = R(0); self.src = R(1) + R(2) + R(3); self.srcC = R(3)
            self.passes = 8 if '32x32' in op else 4
        elif op.startswith('v_'):
            self.kind = 'trans' if op.replace('_e32', '').replace('_e64', '') in TRANS else 'valu'
            self.isdpp = '_dpp' in op or 'quad_perm' in mods or 'row_' in mods
            if op.startswith('v_permlane') and 'swap' in op:
                self.dst = R(0) + R(1); self.src = R(0) + R(1); self.kind = 'permlane'
            elif op.startswith('v_readlane') or op.startswith('v_readfirstlane'):
                self.dst = R(0); self.src = allsrc(1); self.kind = 'readlane'
            elif op.startswith('v_cmp'):
                self.dst = R(0); self.src = allsrc(1)
            elif op.startswith('v_add_co') or op.startswith('v_addc_co') or op.startswith('v_sub_co'):
                self.dst = R(0) + R(1); self.src = allsrc(2)
            else:
                self.dst = R(0); self.src = allsrc(1)
                self.srcAB = R(1) + R(2)
                if op.startswith(('v_fmac', 'v_dot2c', 'v_pk_fmac', 'v_mac')) or self.isdpp or 'op_sel' in mods and op.startswith('v_cvt') :
                    self.src += R(0)
                if op.startswith('v_cndmask') and len(ops) == 3:
                    self.src += [('s', 'vcc')]
                if op.startswith('v_writelane'): self.src += R(0)
        elif op.startswith('ds_'):
            self.kind = 'ds'
            if op.startswith('ds_read') or op.startswith('ds_bpermute') or op.startswith('ds_swizzle') or op.startswith('ds_permute'):
                self.dst = R(0); self.src = allsrc(1)
            else:
                self.src = allsrc(0)
        elif op.startswith('buffer_') or op.startswith('global_'):
            self.kind = 'vmem'
            toks = mods.split()
            if op in ('buffer_wbl2', 'buffer_inv'):
                pass
            elif 'lds' in toks or op.startswith('global_load_lds'):
                self.lds_dma = True
                self.src = allsrc(0) + [('s', 'm0')]
            elif '_load' in op:
                self.dst = R(0); self.src = allsrc(1)
            elif 'atomic' in op:
                self.src = allsrc(0)
                if 'sc0' in toks: self.dst = R(0)
            else:
                self.src = allsrc(0)
                self.wide_store = op.endswith('x4') or op.endswith('x3')
                self.srcC = R(0) if op.startswith('buffer_') else R(1)
        elif op.startswith('s_load') or op.startswith('s_memtime') or op.startswith('s_memrealtime'):
            self.kind = 'smem'
            self.dst = R(0); self.src = allsrc(1)
        elif op.startswith('s_waitcnt') or op in ('s_nop', 's_barrier', 's_endpgm', 's_setprio', 's_sleep'):
            self.kind = 'ctl'
        elif op.startswith('s_cbranch') or op == 's_branch':
            self.kind = 'branch'
        elif op.startswith('s_'):
            self.kind = 'salu'
            if op.startswith('s_cmp') or op.startswith('s_bitcmp'):
                self.src = allsrc(0)
            elif op.startswith('s_getpc'):
                self.dst = R(0)
            else:
                self.dst = R(0); self.src = allsrc(1)
                if 'saveexec' in op: self.dst += [('s', 'exec')]; self.src += [('s', 'exec')]
        else:
            raise ValueError('unknown op ' + text)

class Asm:
    def __init__(self):
        self.out = []
        self.hist = []
        self.vmq = []
        self.lgq = []
        self.smem = set()
        self.smem_pending = False
        self.nops = 0
    def raw(self, s): self.out.append(s)
    def comment(self, s): self.out.append('  ; ' + s)
    def _emit_wait(self, vm=None, lg=None):
        parts = []
        if vm is not None:
            parts.append('vmcnt(%d)' % min(vm, 63))
            self.vmq = self.vmq[len(self.vmq)-vm:] if vm < len(self.vmq) and vm > 0 else ([] if vm == 0 else self.vmq)
        if lg is not None:
            assert lg <= 15
            parts.append('lgkmcnt(%d)' % lg)
            self.lgq = self.lgq[len(self.lgq)-lg:] if lg < len(self.lgq) and lg > 0 else ([] if lg == 0 else self.lgq)
            if lg == 0:
                self.smem = set(); self.smem_pending = False
        self.out.append('  s_waitcnt ' + ' '.join(parts))
        self._push(None)
    def _push(self, ins):
        self.hist.append(ins)
        if len(self.hist) > 24: self.hist.pop(0)
    def waitvm(self, n=0): self._emit_wait(vm=n)
    def waitlg(self, n=0): self._emit_wait(lg=n)
    def nop(self, n):
        while n > 0:
            k = min(n, 16)
            self.out.append('  s_nop %d' % (k-1))
            for _ in range(k): self._push(None)
            self.nops += k
            n -= k
    def _auto_wait(self, ins):
        regs = set(ins.src) | set(ins.dst)
        vm = None
        for i, d in enumerate(self.vmq):
            if d & regs:
                vm = len(self.vmq) - 1 - i
        lg = None
        for i, d in enumerate(self.lgq):
            if d & regs:
                lg = len(self.lgq) - 1 - i
        if self.smem & regs: lg = 0
        if lg is not None and self.smem_pending: lg = 0
        if lg is not None and lg > 15: lg = 15
        if vm is not None or lg is not None:
            self._emit_wait(vm, lg)
    def _hazard(self, ins):
        need = 0
        src = set(ins.src); dst = set(ins.dst)
        vsrc = {r for r in src if r[0] == 'v'}; vdst = {r for r in dst if r[0] == 'v'}
        ssrc = {r for r in src if r[0] == 's'}
        n = len(self.hist)
        for back in range(1, n+1):
            p = self.hist[n-back]
            if p is None: continue
            gap = back - 1
            req = 0
            pd = set(p.dst)
            pvd = {r for r in pd if r[0] == 'v'}; psd = {r for r in pd if r[0] == 's'}
            pvalu = p.kind in ('valu', 'trans', 'permlane', 'readlane')
            if p.kind == 'mfma':
                big = p.passes == 8
                if ins.kind == 'mfma':
                    ab = set(ins.src) - set(ins.srcC)
                    if pvd & ab: req = max(req, 12 if big else 8)
                    if pvd & set(ins.srcC):
                        if not (set(ins.srcC) == pvd and ins.passes == p.passes): req = max(req, 10 if big else 6)
                    if (pvd & vdst) and not (set(ins.srcC) == pvd): req = max(req, 12 if big else 8)
                else:
                    if pvd & (vsrc | vdst): req = max(req, 12 if big else 8)
                    if ins.kind in ('valu', 'trans', 'permlane') and (set(p.srcC) & vdst): req = max(req, 7 if big else 3)
            if pvalu:
                if ins.kind == 'mfma' and (pvd & vsrc): req = max(req, 2)
                if ins.isdpp and (pvd & vsrc): req = max(req, 2)
                if ins.kind == 'permlane' and (pvd & vsrc): req = max(req, 2)
                if ins.kind == 'readlane' and (pvd & vsrc): req = max(req, 1)
                if p.kind == 'trans' and ins.kind in ('valu', 'permlane', 'readlane', 'mfma') and (pvd & vsrc): req = max(req, 1 if ins.kind != 'mfma' else 2)
                if psd:
                    if ins.kind in ('valu', 'trans', 'permlane') and (psd & ssrc): req = max(req, 2)
                    if ins.kind == 'readlane' and (psd & ssrc): req = max(req, 4)
                    if ins.kind in ('vmem',) and (psd & ssrc): req = max(req, 5)
                    if ins.kind in ('salu', 'smem', 'branch') and (psd & ssrc): req = max(req, 4)
                    if ('s', 'exec') in psd: req = max(req, 5)
            if p.op.startswith('v_dot') and (pvd & (vsrc | vdst)):
                if ins.op != p.op: req = max(req, 3)
                else:
                    ab = set(ins.src) - set(ins.dst) if ins.op.startswith('v_dot2c') else set(ins.srcAB)
                    if pvd & ab: req = max(req, 3)
            if p.kind == 'vmem' and p.wide_store and (set(p.srcC) & vdst):
                req = max(req, 2)
            if p.kind == 'salu' and ('s', 'm0') in psd and ins.lds_dma: req = max(req, 1)
            if p.kind == 'salu' and ('s', 'exec') in psd and ins.kind in ('mfma',): req = max(req, 4)
            if p.kind == 'salu' and ('s', 'exec') in psd and ins.isdpp: req = max(req, 5)
            need = max(need, req - gap)
        if need > 0: self.nop(need)
    def __call__(self, text):
        ins = Ins(text)
        if ins.kind == 'branch' and ins.op in ('s_cbranch_vccz', 's_cbranch_vccnz'):
            ins.src = [('s', 'vcc')]
        self._auto_wait(ins)
        self._hazard(ins)
        self.out.append('  ' + text)
        self._push(ins)
        if ins.kind == 'vmem':
            self.vmq.append(set(ins.dst))
            assert len(self.vmq) <= 63, 'vmcnt overflow'
        elif ins.kind == 'ds':
            self.lgq.append(set(ins.dst))
        elif ins.kind == 'smem':
            self.smem |= set(ins.dst); self.smem_pending = True
        return ins
    def barrier(self):
        if self.lgq or self.smem_pending: self.waitlg(0)
        self('s_barrier')
    def settle(self):
        self.nop(12) if any(p is not None and p.kind == 'mfma' for p in self.hist[-12:]) else self.nop(5) if any(p is not None and p.kind != 'ctl' and p.kind != 'salu' for p in self.hist[-5:]) else None
    def label(self, name):
        self.out.append(name + ':')
    def reset(self):
        self.hist = []; self.vmq = []; self.lgq = []; self.smem = set(); self.smem_pending = False
    def text(self): return '\n'.join(self.out) + '\n'

def v(n, k=1): return 'v%d' % n if k == 1 else 'v[%d:%d]' % (n, n+k-1)
def s(n, k=1): return 's%d' % n if k == 1 else 's[%d:%d]' % (n, n+k-1)
```

```python
from asmlib import *
import struct

def fbits(x): return '0x%08x' % struct.unpack('<I', struct.pack('<f', x))[0]

WS_Z1   = 0
WS_Z2   = 4 << 20
WS_COEF = 8 << 20
COEF_BYTES = 513 * 8192
WS_YP   = 13 << 20
WS_STAT = 14 << 20
WS_KEYS = WS_STAT + 16384
WS_SEL  = WS_KEYS + 4096
MFMA = 'v_mfma_f32_32x32x16_bf16'
DPPM = 'row_mask:0xf bank_mask:0xf'

def srd(a, sreg, base_lo, base_hi, nbytes, add=0):
    if add:
        a('s_add_u32 %s, %s, 0x%x' % (s(sreg), s(base_lo), add))
        a('s_addc_u32 %s, %s, 0' % (s(sreg+1), s(base_hi)))
    else:
        a('s_mov_b32 %s, %s' % (s(sreg), s(base_lo)))
        a('s_mov_b32 %s, %s' % (s(sreg+1), s(base_hi)))
    a('s_mov_b32 %s, 0x%x' % (s(sreg+2), nbytes))
    a('s_mov_b32 %s, 0x20000' % s(sreg+3))

def allsum(a, regs, tmps):
    for pat in ('quad_perm:[1,0,3,2]', 'quad_perm:[2,3,0,1]', 'row_half_mirror', 'row_mirror'):
        for r in regs:
            a('v_add_f32_dpp %s, %s, %s %s %s' % (v(r), v(r), v(r), pat, DPPM))
    for sw in ('v_permlane16_swap_b32', 'v_permlane32_swap_b32'):
        for r, t in zip(regs, tmps): a('v_mov_b32 %s, %s' % (v(t), v(r)))
        for r, t in zip(regs, tmps): a('%s %s, %s' % (sw, v(t), v(r)))
        for r, t in zip(regs, tmps): a('v_add_f32 %s, %s, %s' % (v(r), v(t), v(r)))

def allmax_u32(a, r, t):
    for pat in ('quad_perm:[1,0,3,2]', 'quad_perm:[2,3,0,1]', 'row_half_mirror', 'row_mirror'):
        a('v_max_u32_dpp %s, %s, %s %s %s' % (v(r), v(r), v(r), pat, DPPM))
    for sw in ('v_permlane16_swap_b32', 'v_permlane32_swap_b32'):
        a('v_mov_b32 %s, %s' % (v(t), v(r)))
        a('%s %s, %s' % (sw, v(t), v(r)))
        a('v_max_u32 %s, %s, %s' % (v(r), v(t), v(r)))

def gen_trig(a, vlane, COS, SIN, TC, TS, tmp, tscale=None):
    step, base = tmp, tmp+1
    a('v_and_b32 %s, 31, %s' % (v(step), v(vlane)))
    a('v_cvt_f32_u32 %s, %s' % (v(step), v(step)))
    a('v_lshrrev_b32 %s, 5, %s' % (v(base), v(vlane)))
    a('v_cvt_f32_u32 %s, %s' % (v(base), v(base)))
    a('v_mul_f32 %s, %s, %s' % (v(step), fbits(1/32), v(step)))
    a('v_mul_f32 %s, 4.0, %s' % (v(base), v(base)))
    a('v_mul_f32 %s, %s, %s' % (v(base), v(step), v(base)))
    for k in range(16):
        t, j = k >> 2, k & 3
        a('v_fmamk_f32 %s, %s, %s, %s' % (v(SIN+k), v(step), fbits(8*t+j), v(base)))
    if TC is not None:
        for k in range(16):
            a('v_mul_f32 %s, %s, %s' % (v(TS+k), fbits(1/32), v(SIN+k)))
        for k in range(16):
            a('v_cos_f32 %s, %s' % (v(TC+k), v(TS+k)))
        for k in range(16):
            a('v_sin_f32 %s, %s' % (v(TS+k), v(TS+k)))
        if tscale is not None:
            for k in range(16):
                a('v_mul_f32 %s, %s, %s' % (v(TC+k), fbits(tscale), v(TC+k)))
                a('v_mul_f32 %s, %s, %s' % (v(TS+k), fbits(tscale), v(TS+k)))
    for k in range(16):
        a('v_cos_f32 %s, %s' % (v(COS+k), v(SIN+k)))
    for k in range(16):
        a('v_sin_f32 %s, %s' % (v(SIN+k), v(SIN+k)))

def gen_G(a, COS, SIN, GR, GI):
    for k in range(16):
        a('v_cvt_pk_bf16_f32 %s, %s, %s' % (v(GR+k), v(COS+k), v(SIN+k)))
    for k in range(16):
        a('v_cvt_pk_bf16_f32 %s, -%s, %s' % (v(GI+k), v(SIN+k), v(COS+k)))

def twiddle_ops(DR, DI, TC, TS, PR, PI):
    ops = []
    for k in range(0, 16, 2):
        p = lambda b: v(b+k, 2)
        ops.append('v_pk_mul_f32 %s, %s, %s' % (p(PR), p(DR), p(TC)))
        ops.append('v_pk_mul_f32 %s, %s, %s' % (p(PI), p(DI), p(TC)))
        ops.append('v_pk_fma_f32 %s, %s, %s, %s' % (p(PR), p(DI), p(TS), p(PR)))
        ops.append('v_pk_fma_f32 %s, %s, %s, %s neg_lo:[1,0,0] neg_hi:[1,0,0]' % (p(PI), p(DR), p(TS), p(PI)))
    return ops

def cvt_pairs(PR, PI, OUT, negi=False):
    return ['v_cvt_pk_bf16_f32 %s, %s, %s%s' % (v(OUT+k), v(PR+k), '-' if negi else '', v(PI+k)) for k in range(16)]

def stage_AdataBG(D_R, D_I, X, GR, GI):
    ops = []
    for t in range(4):
        cr = '0' if t == 0 else v(D_R, 16); ci = '0' if t == 0 else v(D_I, 16)
        ops.append('%s %s, %s, %s, %s' % (MFMA, v(D_R, 16), v(X+4*t, 4), v(GR+4*t, 4), cr))
        ops.append('%s %s, %s, %s, %s' % (MFMA, v(D_I, 16), v(X+4*t, 4), v(GI+4*t, 4), ci))
    return ops
def stage_AGBdata(D_R, D_I, X, GR, GI):
    ops = []
    for t in range(4):
        cr = '0' if t == 0 else v(D_R, 16); ci = '0' if t == 0 else v(D_I, 16)
        ops.append('%s %s, %s, %s, %s' % (MFMA, v(D_R, 16), v(GR+4*t, 4), v(X+4*t, 4), cr))
        ops.append('%s %s, %s, %s, %s' % (MFMA, v(D_I, 16), v(GI+4*t, 4), v(X+4*t, 4), ci))
    return ops

EX_PLANE = 1168*4
EX_BYTES = 4*EX_PLANE

def ex_addrs(a, vlane, swave, VW, VR, exbase, tmp):
    a('v_and_b32 %s, 31, %s' % (v(tmp), v(vlane)))
    a('v_lshrrev_b32 %s, 5, %s' % (v(tmp+1), v(vlane)))
    a('v_lshlrev_b32 %s, 4, %s' % (v(tmp+1), v(tmp+1)))
    a('v_mul_u32_u24 %s, 144, %s' % (v(VW), v(tmp)))
    a('v_add_u32 %s, %s, %s' % (v(VW), v(tmp+1), v(VW)))
    a('s_mul_i32 s40, %s, %d' % (s(swave), EX_PLANE))
    a('s_add_u32 s40, s40, %d' % exbase)
    a('v_add_u32 %s, s40, %s' % (v(VW), v(VW)))
    a('v_and_b32 %s, 3, %s' % (v(VR), v(tmp)))
    a('v_mul_u32_u24 %s, %d, %s' % (v(VR), EX_PLANE, v(VR)))
    a('v_lshrrev_b32 %s, 2, %s' % (v(tmp), v(tmp)))
    a('v_mul_u32_u24 %s, 144, %s' % (v(tmp), v(tmp)))
    a('v_add3_u32 %s, %s, %s, %s' % (v(VR), v(VR), v(tmp), v(tmp+1)))
    a('s_mul_i32 s40, %s, %d' % (s(swave), 8*144))
    a('s_add_u32 s40, s40, %d' % exbase)
    a('v_add_u32 %s, s40, %s' % (v(VR), v(VR)))

def out_addr(a, vlane, VO, sblk, tmp):
    a('v_and_b32 %s, 31, %s' % (v(tmp), v(vlane)))
    a('v_lshrrev_b32 %s, 2, %s' % (v(VO), v(tmp)))
    a('v_lshlrev_b32 %s, 5, %s' % (v(VO), v(VO)))
    a('v_lshrrev_b32 %s, 5, %s' % (v(tmp+1), v(vlane)))
    a('v_add_u32 %s, %s, %s' % (v(VO), v(tmp+1), v(VO)))
    a('v_lshlrev_b32 %s, 14, %s' % (v(VO), v(VO)))
    a('s_lshr_b32 s40, %s, 2' % s(sblk))
    a('s_and_b32 s40, s40, 3')
    a('v_and_b32 %s, 3, %s' % (v(tmp), v(tmp)))
    a('v_xor_b32 %s, s40, %s' % (v(tmp), v(tmp)))
    a('v_lshlrev_b32 %s, 4, %s' % (v(tmp), v(tmp)))
    a('v_add_u32 %s, %s, %s' % (v(VO), v(tmp), v(VO)))

def fft_tail(a, P, PX, DR, DI, GR, GI, OUT, VW, VR, VO, srd_out, swave, sblk, negi=False):
    for t in range(4):
        a('ds_write_b128 %s, %s offset:%d' % (v(VW), v(P+4*t, 4), 32*t))
    a.barrier()
    for t in range(4):
        a('ds_read_b128 %s, %s offset:%d' % (v(PX+4*t, 4), v(VR), 32*t))
    for o in stage_AdataBG(DR, DI, PX, GR, GI): a(o)
    a('s_lshl_b32 s40, %s, 17' % s(swave))
    a('s_lshl_b32 s41, %s, 6' % s(sblk))
    a('s_add_u32 s40, s40, s41')
    a('s_add_u32 s41, s40, 0x8000')
    a('s_add_u32 s42, s40, 0x10000')
    a('s_add_u32 s43, s40, 0x18000')
    cv = cvt_pairs(DR, DI, OUT, negi)
    for q in range(4):
        for o in cv[4*q:4*q+4]: a(o)
        a('buffer_store_dwordx4 %s, %s, %s, %s offen' % (v(OUT+4*q, 4), v(VO), s(srd_out, 4), s(40+q)))
```

```python
from common import *

K1_LDS = 16384 + EX_BYTES
K1_LDS = max(K1_LDS, 33280)

def k1_fft(a):
    a.reset()
    SW = 3
    a('s_load_dwordx2 s[4:5], s[0:1], 0')
    a('s_load_dwordx2 s[6:7], s[0:1], 32')
    a('s_load_dwordx2 s[8:9], s[0:1], 80')
    VL, VO16 = 1, 2
    a('v_lshrrev_b32 v3, 6, v0')
    a('v_and_b32 %s, 63, v0' % v(VL))
    a('v_readfirstlane_b32 %s, v3' % s(SW))
    a('v_lshlrev_b32 %s, 4, %s' % (v(VO16), v(VL)))
    a('s_lshr_b32 s10, s2, 5')
    a('s_lshl_b32 s10, s10, 7')
    a('s_and_b32 s11, s2, 31')
    a('s_add_u32 s10, s10, s11')
    a('s_lshl_b32 s11, %s, 5' % s(SW))
    a('s_add_u32 s10, s10, s11')
    a('s_lshl_b32 s11, s10, 12')
    srd(a, 12, 4, 5, 2048*1024*2)
    srd(a, 16, 6, 7, 2048)
    X, W = 136, 152
    for q in range(4):
        a('buffer_load_dwordx4 %s, %s, s[12:15], s11 offen offset:%d' % (v(X+4*q, 4), v(VO16), 1024*q))
    for q in range(2):
        a('buffer_load_dwordx4 %s, %s, s[16:19], 0 offen offset:%d' % (v(W+4*q, 4), v(VO16), 1024*q))
    srd(a, 20, 8, 9, 4 << 20, WS_Z1)
    srd(a, 24, 8, 9, 32768, WS_STAT)
    COS, SIN = 16, 32
    GR, GI = 48, 64
    FR, FI, NFI = 80, 88, 96
    TC, TS = 104, 120
    gen_trig(a, VL, COS, SIN, TC, TS, 4)
    gen_G(a, COS, SIN, GR, GI)
    for m in range(8):
        a('v_cvt_pk_bf16_f32 %s, %s, %s' % (v(FR+m), v(COS+2*m), v(COS+2*m+1)))
        a('v_cvt_pk_bf16_f32 %s, -%s, -%s' % (v(FI+m), v(SIN+2*m), v(SIN+2*m+1)))
        a('v_cvt_pk_bf16_f32 %s, %s, %s' % (v(NFI+m), v(SIN+2*m), v(SIN+2*m+1)))
    VW, VR, VOUT, VTR, VST = 8, 9, 10, 11, 12
    ex_addrs(a, VL, SW, VW, VR, 16384, 4)
    out_addr(a, VL, VOUT, 2, 4)
    a('v_lshrrev_b32 v4, 5, %s' % v(VL)); a('v_lshlrev_b32 v4, 8, v4')
    a('v_bfe_u32 v5, %s, 2, 2' % v(VL)); a('v_lshlrev_b32 v5, 6, v5')
    a('v_bfe_u32 v6, %s, 4, 1' % v(VL)); a('v_lshlrev_b32 v6, 5, v6')
    a('v_add3_u32 v4, v4, v5, v6')
    a('v_and_b32 v5, 3, %s' % v(VL)); a('v_lshlrev_b32 v5, 3, v5')
    a('s_lshl_b32 s28, %s, 12' % s(SW))
    a('v_add3_u32 %s, v4, v5, s28' % v(VTR))
    a('v_add_u32 %s, s28, %s' % (v(VST), v(VO16)))
    E = 160
    A0, A1, T0, T1 = 4, 6, 14, 15
    a('s_mov_b32 s29, 0x3f803f80')
    a('s_mov_b32 s30, 0xffff0000')
    a('v_mov_b32 %s, 0' % v(A0)); a('v_mov_b32 %s, 0' % v(A1))
    for k in range(8):
        a('v_dot2c_f32_bf16 %s, s29, %s' % (v(A0), v(X+k)))
        a('v_dot2c_f32_bf16 %s, s29, %s' % (v(A1), v(X+8+k)))
    for r in range(2):
        for k in range(8):
            a('v_lshlrev_b32 %s, 16, %s' % (v(E+16*r+2*k), v(X+8*r+k)))
            a('v_and_b32 %s, s30, %s' % (v(E+16*r+2*k+1), v(X+8*r+k)))
    allsum(a, [A0, A1], [T0, T1])
    MEAN0, MEAN1, MB0, MB1 = 224, 225, 226, 228
    a('v_mul_f32 %s, %s, %s' % (v(MEAN0), fbits(1/1024), v(A0)))
    a('v_mul_f32 %s, %s, %s' % (v(MEAN1), fbits(1/1024), v(A1)))
    a('v_cvt_pk_bf16_f32 %s, %s, %s' % (v(T0), v(MEAN0), v(MEAN1)))
    a('v_lshlrev_b32 %s, 16, %s' % (v(MB0), v(T0)))
    a('v_and_b32 %s, s30, %s' % (v(MB1), v(T0)))
    for r, MB in ((0, MB0), (1, MB1)):
        for k in range(8):
            p = v(E+16*r+2*k, 2)
            a('v_pk_add_f32 %s, %s, %s op_sel_hi:[1,0] neg_lo:[0,1] neg_hi:[0,1]' % (p, p, v(MB, 2)))
    for r, A in ((0, A0), (1, A1)):
        p = v(E+16*r, 2)
        a('v_pk_mul_f32 %s, %s, %s' % (v(A, 2), p, p))
    for k in range(1, 8):
        for r, A in ((0, A0), (1, A1)):
            p = v(E+16*r+2*k, 2)
            a('v_pk_fma_f32 %s, %s, %s, %s' % (v(A, 2), p, p, v(A, 2)))
    a('v_add_f32 %s, %s, %s' % (v(A0), v(A0), v(A0+1)))
    a('v_add_f32 %s, %s, %s' % (v(A1), v(A1), v(A1+1)))
    allsum(a, [A0, A1], [T0, T1])
    for A, MEAN, MB in ((A0, MEAN0, MB0), (A1, MEAN1, MB1)):
        a('v_sub_f32 %s, %s, %s' % (v(MEAN), v(MEAN), v(MB)))
        a('v_mul_f32 %s, %s, %s' % (v(A), fbits(1/1024), v(A)))
        a('v_fma_f32 %s, -%s, %s, %s' % (v(A), v(MEAN), v(MEAN), v(A)))
        a('v_max_f32 %s, 0, %s' % (v(A), v(A)))
    a('v_cvt_pk_bf16_f32 %s, %s, %s' % (v(T0), v(A0), v(A1)))
    a('v_lshlrev_b32 %s, 16, %s' % (v(A0), v(T0)))
    a('v_and_b32 %s, s30, %s' % (v(A1), v(T0)))
    a('v_add_f32 %s, %s, %s' % (v(A0), fbits(1e-5), v(A0)))
    a('v_add_f32 %s, %s, %s' % (v(A1), fbits(1e-5), v(A1)))
    a('v_cvt_pk_bf16_f32 %s, %s, %s' % (v(T0), v(A0), v(A1)))
    a('v_lshlrev_b32 %s, 16, %s' % (v(A0), v(T0)))
    a('v_and_b32 %s, s30, %s' % (v(A1), v(T0)))
    a('v_sqrt_f32 %s, %s' % (v(A0), v(A0)))
    a('v_sqrt_f32 %s, %s' % (v(A1), v(A1)))
    a('v_cvt_pk_bf16_f32 %s, %s, %s' % (v(T0), v(A0), v(A1)))
    a('v_lshlrev_b32 %s, 16, %s' % (v(A0), v(T0)))
    a('v_and_b32 %s, s30, %s' % (v(A1), v(T0)))
    S0 = 232
    a('v_rcp_f32 %s, %s' % (v(S0), v(A0)))
    a('v_rcp_f32 %s, %s' % (v(S0+2), v(A1)))
    a('v_mul_f32 %s, -%s, %s' % (v(S0+1), v(MB0), v(S0)) if False else 'v_mul_f32_e64 %s, -%s, %s' % (v(S0+1), v(MB0), v(S0)))
    a('v_mul_f32_e64 %s, -%s, %s' % (v(S0+3), v(MB1), v(S0+2)))
    XN = 192
    for r in range(2):
        for k in range(8):
            p = v(E+16*r+2*k, 2)
            a('v_pk_mul_f32 %s, %s, %s op_sel_hi:[1,0]' % (p, p, v(S0+2*r, 2)))
        for k in range(8):
            a('v_cvt_pk_bf16_f32 %s, %s, %s' % (v(XN+8*r+k), v(E+16*r+2*k), v(E+16*r+2*k+1)))
        for q in range(2):
            a('ds_write_b128 %s, %s offset:%d' % (v(VST), v(XN+8*r+4*q, 4), 2048*r+1024*q))
    XA = 208
    for rho in range(2):
        for tp in range(2):
            for ep in range(2):
                a('ds_read_b64_tr_b16 %s, %s offset:%d' % (v(XA+8*rho+4*tp+2*ep, 2), v(VTR), 2048*rho+1024*tp+512*ep))
    a('v_mov_b32 %s, 0' % v(A0)); a('v_mov_b32 %s, 0' % v(A1))
    for k in range(8):
        a('v_dot2c_f32_bf16 %s, %s, %s' % (v(A0), v(W+k), v(XN+k)))
        a('v_dot2c_f32_bf16 %s, %s, %s' % (v(A1), v(W+k), v(XN+8+k)))
    DR, DI = 16, 32
    Xe, Xo = XA, XA+8
    seq = [(DR, Xe, FR, 0), (DI, Xe, FI, 0), (DR, Xe+4, FR+4, 1), (DI, Xe+4, FI+4, 1),
           (DR, Xo, NFI, 1), (DI, Xo, FR, 1), (DR, Xo+4, NFI+4, 1), (DI, Xo+4, FR+4, 1)]
    for D, A_, B_, acc in seq:
        a('%s %s, %s, %s, %s' % (MFMA, v(D, 16), v(A_, 4), v(B_, 4), v(D, 16) if acc else '0'))
    allsum(a, [A0, A1], [T0, T1])
    a('v_cvt_pk_bf16_f32 %s, %s, %s' % (v(T0), v(A0), v(A1)))
    a('v_and_b32 %s, 0xffff, %s' % (v(A0), v(T0)))
    a('v_lshrrev_b32 %s, 16, %s' % (v(A1), v(T0)))
    a('s_lshl_b32 s31, s10, 1')
    a('s_sub_u32 s32, 2047, s31')
    a('s_sub_u32 s33, 2046, s31')
    for A, sk in ((A0, 32), (A1, 33)):
        a('v_bfe_i32 %s, %s, 15, 1' % (v(T0), v(A)))
        a('v_and_b32 %s, 0x7fff, %s' % (v(T0), v(T0)))
        a('v_or_b32 %s, 0x8000, %s' % (v(T0), v(T0)))
        a('v_xor_b32 %s, %s, %s' % (v(A), v(T0), v(A)))
        a('v_lshlrev_b32 %s, 16, %s' % (v(A), v(A)))
        a('v_or_b32 %s, %s, %s' % (v(A), s(sk), v(A)))
    a('v_max_u32 %s, %s, %s' % (v(A0), v(A0), v(A1)))
    a('s_lshl_b32 s34, s10, 4')
    a('s_lshl_b32 s35, s10, 2')
    a('s_add_u32 s35, s35, 16384')
    a('v_mov_b32 %s, 0' % v(T0))
    a('s_mov_b64 exec, 1')
    a('buffer_store_dwordx4 %s, %s, s[24:27], s34 offen' % (v(S0, 4), v(T0)))
    a('buffer_store_dword %s, %s, s[24:27], s35 offen' % (v(A0), v(T0)))
    a('s_mov_b64 exec, -1')
    PR, PI, P = 160, 176, 192
    for o in twiddle_ops(DR, DI, TC, TS, PR, PI): a(o)
    for o in cvt_pairs(PR, PI, P): a(o)
    fft_tail(a, P, 208, DR, DI, GR, GI, 192, VW, VR, VOUT, 20, SW, 2)
    a('s_endpgm')

def k1_prepass(a):
    a.reset()
    a('s_load_dwordx2 s[4:5], s[0:1], 8')
    a('s_load_dwordx2 s[6:7], s[0:1], 16')
    a('s_load_dwordx2 s[8:9], s[0:1], 80')
    a('s_sub_u32 s3, s2, 256')
    a('s_lshr_b32 s10, s3, 4')
    a('s_and_b32 s11, s3, 15')
    a('v_and_b32 v1, 3, v0')
    a('v_lshrrev_b32 v2, 2, v0')
    a('v_lshrrev_b32 v3, 2, v2')
    a('v_and_b32 v4, 3, v2')
    a('v_lshlrev_b32 v4, 5, v4')
    a('v_add_u32 v3, v3, v4')
    a('v_mul_u32_u24 v3, 1026, v3')
    a('v_lshlrev_b32 v4, 4, v1')
    a('v_add_u32 v3, v3, v4')
    a('s_mul_i32 s12, s10, %d' % (128*1026))
    a('s_lshl_b32 s13, s11, 6')
    a('s_add_u32 s12, s12, s13')
    a('s_add_u32 s13, s12, %d' % (16*1026))
    a('s_add_u32 s14, s12, %d' % (1024*1026))
    a('s_add_u32 s15, s13, %d' % (1024*1026))
    WB = 2048*513*2
    srd(a, 16, 4, 5, WB); srd(a, 20, 6, 7, WB)
    srd(a, 24, 8, 9, COEF_BYTES, WS_COEF)
    L = 8
    def reg(tau, arr, row): return L + 16*tau + 8*arr + 4*row
    for tau in range(2):
        for row in range(2):
            so = 12 + tau + 2*row
            a('buffer_load_dwordx4 %s, v3, s[16:19], %s offen' % (v(reg(tau, 0, row), 4), s(so)))
            a('buffer_load_dwordx4 %s, v3, s[20:23], %s offen' % (v(reg(tau, 1, row), 4), s(so)))
    a('v_mul_u32_u24 v5, %d, v1' % (8*1040))
    a('v_lshlrev_b32 v6, 2, v2')
    a('v_add_u32 v5, v5, v6')
    a('s_mov_b32 s30, 0xffff0000')
    U = 48
    for tau in range(2):
        for d in range(4):
            srcs = [reg(tau, 0, 0)+d, reg(tau, 0, 1)+d, reg(tau, 1, 0)+d, reg(tau, 1, 1)+d]
            for n, sr in enumerate(srcs):
                a('v_lshlrev_b32 %s, 16, %s' % (v(U+2*n), v(sr)))
                a('v_and_b32 %s, s30, %s' % (v(U+2*n+1), v(sr)))
            R0, R1, I0, I1 = U, U+2, U+4, U+6
            SR, SI, DR_, DI_ = U+8, U+10, U+12, U+14
            a('v_pk_add_f32 %s, %s, %s' % (v(SR, 2), v(R0, 2), v(R1, 2)))
            a('v_pk_add_f32 %s, %s, %s' % (v(SI, 2), v(I0, 2), v(I1, 2)))
            a('v_pk_add_f32 %s, %s, %s neg_lo:[0,1] neg_hi:[0,1]' % (v(DR_, 2), v(R0, 2), v(R1, 2)))
            a('v_pk_add_f32 %s, %s, %s neg_lo:[0,1] neg_hi:[0,1]' % (v(DI_, 2), v(I0, 2), v(I1, 2)))
            O = U+16+4*(d & 1)
            for hi in range(2):
                a('v_cvt_pk_bf16_f32 %s, %s, %s' % (v(O+2*hi), v(SR+hi), v(SI+hi)))
                a('v_cvt_pk_bf16_f32 %s, %s, %s' % (v(O+2*hi+1), v(DR_+hi), v(DI_+hi)))
            for hi in range(2):
                e = 2*d + hi
                a('ds_write_b32 v5, %s offset:%d' % (v(O+2*hi), e*1040 + 256*tau))
                a('ds_write_b32 v5, %s offset:%d' % (v(O+2*hi+1), e*1040 + 512 + 256*tau))
    a.barrier()
    a('v_lshrrev_b32 v1, 6, v0')
    a('v_bfe_u32 v2, v0, 5, 1')
    a('v_and_b32 v3, 31, v0')
    a('v_mul_u32_u24 v4, 1040, v1')
    a('v_lshlrev_b32 v5, 9, v2')
    a('v_lshlrev_b32 v6, 4, v3')
    a('v_add3_u32 v4, v4, v5, v6')
    a('v_lshlrev_b32 v7, 13, v1')
    a('v_lshlrev_b32 v5, 10, v2')
    a('v_add3_u32 v7, v7, v5, v6')
    for q in range(8):
        a('ds_read_b128 %s, v4 offset:%d' % (v(8+4*q, 4), q*4*1040))
    a('s_lshl_b32 s12, s11, 18')
    a('s_lshr_b32 s13, s10, 1'); a('s_lshl_b32 s13, s13, 11'); a('s_add_u32 s12, s12, s13')
    a('s_and_b32 s13, s10, 1'); a('s_lshl_b32 s13, s13, 9'); a('s_add_u32 s12, s12, s13')
    a('s_cmp_eq_u32 s11, 0')
    a('s_cselect_b32 s14, 64, 0')
    a('v_mov_b32 v5, 0x7ff00000')
    a('v_cmp_gt_u32 vcc, s14, v0')
    a('v_cndmask_b32 v6, v7, v5, vcc')
    for q in range(8):
        a('buffer_store_dwordx4 %s, %s, s[24:27], s12 offen' % (v(8+4*q, 4), v(6 if q == 0 else 7)))
        if q < 7: a('s_add_u32 s12, s12, %d' % (4*8192))
    a('s_endpgm')

def k1_special(a):
    a.reset()
    a('s_load_dwordx2 s[4:5], s[0:1], 8')
    a('s_load_dwordx2 s[6:7], s[0:1], 16')
    a('s_load_dwordx2 s[8:9], s[0:1], 80')
    a('s_sub_u32 s10, s2, 384')
    a('v_lshrrev_b32 v1, 7, v0')
    a('v_and_b32 v2, 127, v0')
    a('v_lshrrev_b32 v3, 2, v2')
    a('v_and_b32 v4, 3, v2')
    a('v_lshlrev_b32 v4, 5, v4')
    a('v_add_u32 v3, v3, v4')
    a('s_lshl_b32 s11, s10, 7')
    a('v_add_u32 v3, s11, v3')
    a('v_lshlrev_b32 v4, 10, v1')
    a('v_add_u32 v5, 1024, v3')
    a('v_sub_u32 v6, 2048, v3'); a('v_and_b32 v6, 2047, v6')
    a('v_sub_u32 v7, 1024, v3')
    for r in (3, 5, 6, 7):
        a('v_mul_u32_u24 %s, 1026, %s' % (v(8+r), v(r)))
        a('v_add_u32 %s, %s, v4' % (v(8+r), v(8+r)))
    WB = 2048*513*2
    srd(a, 16, 4, 5, WB); srd(a, 20, 6, 7, WB)
    srd(a, 24, 8, 9, COEF_BYTES, WS_COEF)
    for n, r in enumerate((3, 5, 6, 7)):
        a('buffer_load_ushort %s, %s, s[16:19], 0 offen' % (v(20+n), v(8+r)))
        a('buffer_load_ushort %s, %s, s[20:23], 0 offen' % (v(24+n), v(8+r)))
    for n in range(8):
        a('v_lshlrev_b32 %s, 16, %s' % (v(20+n), v(20+n)))
    a('v_add_f32 v28, v20, v22'); a('v_sub_f32 v29, v24, v26')
    a('v_add_f32 v30, v21, v23'); a('v_sub_f32 v31, v25, v27')
    a('v_add_f32 v32, v28, v30'); a('v_add_f32 v33, v29, v31')
    a('v_sub_f32 v34, v28, v30'); a('v_sub_f32 v35, v29, v31')
    for r in range(32, 36): a('v_mul_f32 %s, 0.5, %s' % (v(r), v(r)))
    a('v_cvt_pk_bf16_f32 v36, v32, v33')
    a('v_cvt_pk_bf16_f32 v37, v34, v35')
    a('v_lshlrev_b32 v8, 22, v1')
    a('v_lshlrev_b32 v9, 2, v2')
    a('v_add_u32 v8, v8, v9')
    a('s_lshr_b32 s12, s10, 1'); a('s_lshl_b32 s12, s12, 11')
    a('s_and_b32 s13, s10, 1'); a('s_lshl_b32 s13, s13, 9'); a('s_add_u32 s12, s12, s13')
    a('buffer_store_dword v36, v8, s[24:27], s12 offen')
    a('buffer_store_dword v37, v8, s[24:27], s12 offen offset:1024')
    a('s_endpgm')

def k1(a, name):
    a.raw('.globl %s\n.p2align 8\n.type %s,@function\n%s:' % (name, name, name))
    a.reset()
    a('s_cmp_lt_u32 s2, 256'); a('s_cbranch_scc1 K1_FFT')
    a('s_cmp_lt_u32 s2, 384'); a('s_cbranch_scc1 K1_PRE')
    a('s_cmp_lt_u32 s2, 392'); a('s_cbranch_scc1 K1_SPC')
    a('s_endpgm')
    a.label('K1_FFT'); k1_fft(a)
    a.label('K1_PRE'); k1_prepass(a)
    a.label('K1_SPC'); k1_special(a)
```

```python
from common import *

R0, R1, EXB = 0, 16384, 32768
K2_LDS = EXB + EX_BYTES
K2_VGPR = 256
NMLP = 224

def twiddle_inplace(a, DR, DI, TC, TS, OUT, tmps, negi=False, inter=None):
    inter = list(inter or [])
    ops = []
    for n, k in enumerate(range(0, 16, 2)):
        p = lambda b: v(b+k, 2)
        T = tmps[n % len(tmps)]
        ops.append('v_pk_mul_f32 %s, %s, %s' % (v(T, 2), p(DR), p(TC)))
        ops.append('v_pk_fma_f32 %s, %s, %s, %s' % (v(T, 2), p(DI), p(TS), v(T, 2)))
        ops.append('v_pk_mul_f32 %s, %s, %s' % (p(DI), p(DI), p(TC)))
        ops.append('v_pk_fma_f32 %s, %s, %s, %s neg_lo:[1,0,0] neg_hi:[1,0,0]' % (p(DI), p(DR), p(TS), p(DI)))
        ops.append('v_cvt_pk_bf16_f32 %s, %s, %s' % (v(OUT+k), v(T), v(DI+k)))
        ops.append('v_cvt_pk_bf16_f32 %s, %s, %s' % (v(OUT+k+1), v(T+1), v(DI+k+1)))
    return ops

def interleave(a, mf, va, lead=0):
    n = len(mf); per = (len(va) + n - 1)//n if n else 0
    i = 0
    for m in mf:
        a(m)
        for o in va[i:i+per]: a(o)
        i += per
    for o in va[i:]: a(o)

def k2_fft(a):
    a.reset()
    SW, SJ = 3, 10
    a('s_load_dwordx2 s[8:9], s[0:1], 80')
    VL, VO16 = 1, 2
    a('v_lshrrev_b32 v3, 6, v0')
    a('v_and_b32 %s, 63, v0' % v(VL))
    a('v_readfirstlane_b32 %s, v3' % s(SW))
    a('v_lshlrev_b32 %s, 4, %s' % (v(VO16), v(VL)))
    a('s_sub_u32 %s, s2, %d' % (s(SJ), NMLP))
    a('s_lshr_b32 s11, s10, 5')
    a('s_and_b32 s12, s10, 31')
    a('s_sub_u32 s13, 7, s11'); a('s_lshl_b32 s13, s13, 5')
    a('s_sub_u32 s14, 32, s12'); a('s_and_b32 s14, s14, 31'); a('s_add_u32 s13, s13, s14')
    srd(a, 20, 8, 9, 4 << 20, WS_Z1)
    MIRD = 208
    a('s_or_b32 s15, s12, %s' % s(SW))
    a('s_cmp_eq_u32 s15, 0')
    a('s_cselect_b32 s16, 1, 0')
    a('s_and_b32 s17, s11, 3')
    a('s_cmp_lg_u32 s17, 0')
    a('s_cselect_b32 s17, s16, 0')
    a('s_cmp_eq_u32 s17, 0')
    a('s_cbranch_scc1 K2_NOSPEC')
    a.raw('  s_sub_u32 s18, 8, s11'); a.raw('  s_and_b32 s18, s18, 7'); a.raw('  s_lshl_b32 s18, s18, 19')
    a.raw('  v_lshlrev_b32 v4, 6, v1'); a.raw('  v_bfe_u32 v5, v1, 2, 2'); a.raw('  v_lshlrev_b32 v5, 4, v5'); a.raw('  v_add_u32 v4, v4, v5')
    for t in range(4):
        a.raw('  buffer_load_dwordx4 %s, v4, s[20:23], s18 offen' % v(MIRD+4*t, 4))
        if t < 3: a.raw('  s_add_u32 s18, s18, 4096')
    a.label('K2_NOSPEC')
    a('s_lshl_b32 s18, %s, 12' % s(SW))
    a('s_lshl_b32 s19, s10, 14'); a('s_add_u32 s19, s19, s18')
    a('s_add_u32 m0, s18, %d' % R0)
    for q in range(4):
        a('buffer_load_dwordx4 %s, s[20:23], s19 offen offset:%d lds' % (v(VO16), 1024*q))
    a('s_lshl_b32 s19, s13, 14'); a('s_add_u32 s19, s19, s18')
    a('s_add_u32 m0, s18, %d' % R1)
    for q in range(4):
        a('buffer_load_dwordx4 %s, s[20:23], s19 offen offset:%d lds' % (v(VO16), 1024*q))
    a('s_lshl_b32 s24, s11, 7'); a('s_lshl_b32 s25, %s, 5' % s(SW)); a('s_add_u32 s24, s24, s25'); a('s_add_u32 s24, s24, s12')
    a('s_sub_u32 s25, 1024, s24')
    a('s_cmp_lt_u32 s11, 4')
    a('s_cselect_b32 s26, s24, s25')
    a('s_cselect_b32 s27, 1, 0')
    srd(a, 28, 8, 9, COEF_BYTES, WS_COEF)
    SP, DP = 176, 192
    a('s_lshl_b32 s32, s26, 13'); a('s_add_u32 s33, s32, 4096')
    for t in range(4):
        so = 32 + (t >> 1)
        a('buffer_load_dwordx4 %s, %s, s[28:31], %s offen offset:%d' % (v(SP+4*t, 4), v(VO16), s(so), (t & 1)*2048))
        a('buffer_load_dwordx4 %s, %s, s[28:31], %s offen offset:%d' % (v(DP+4*t, 4), v(VO16), s(so), (t & 1)*2048 + 1024))
    srd(a, 36, 8, 9, 4 << 20, WS_Z2)
    COS, SIN, GR, GI, TC, TS, SN, CS = 16, 32, 48, 64, 80, 96, 112, 128
    gen_trig(a, VL, COS, SIN, TC, TS, 4)
    gen_G(a, COS, SIN, GR, GI)
    a('v_and_b32 v4, 31, %s' % v(VL)); a('v_lshrrev_b32 v5, 5, %s' % v(VL)); a('v_lshlrev_b32 v5, 7, v5'); a('v_add_u32 v4, v4, v5')
    a('v_cvt_f32_u32 v4, v4')
    a('s_cmp_eq_u32 s27, 1'); a('s_cselect_b32 s34, 0, %s' % fbits(0.5))
    a('v_mov_b32 v5, s34')
    a('v_fmac_f32 v5, %s, v4' % fbits(1/2048))
    for k in range(16):
        a('v_add_f32 %s, %s, v5' % (v(SN+k), fbits(((k & 3) + 8*(k >> 2))/64)))
    for k in range(16): a('v_cos_f32 %s, %s' % (v(CS+k), v(SN+k)))
    for k in range(16): a('v_sin_f32 %s, %s' % (v(SN+k), v(SN+k)))
    VW, VR, VOUT, VA, VB = 8, 9, 10, 11, 12
    ex_addrs(a, VL, SW, VW, VR, EXB, 4)
    out_addr(a, VL, VOUT, SJ, 4)
    a('v_bfe_u32 v4, %s, 2, 2' % v(VL))
    a('v_lshlrev_b32 v5, 6, %s' % v(VL))
    a('v_xor_b32 v6, %s, v4' % s(SW)); a('v_lshlrev_b32 v6, 4, v6'); a('v_add_u32 %s, v5, v6' % v(VA))
    a('s_sub_u32 s34, 3, %s' % s(SW)); a('s_sub_u32 s35, 4, %s' % s(SW)); a('s_and_b32 s35, s35, 3')
    a('s_cmp_eq_u32 s12, 0'); a('s_cselect_b32 s34, s35, s34')
    a('s_cmp_eq_u32 s16, 1'); a('s_cselect_b32 s35, %d, %d' % (R0, R1))
    a('v_xor_b32 v6, s34, v4'); a('v_lshlrev_b32 v6, 4, v6'); a('v_add3_u32 %s, v5, v6, s35' % v(VB))
    a.waitvm(8)
    a.barrier()
    FA, SB = 144, 160
    for t in range(4): a('ds_read_b128 %s, %s offset:%d' % (v(FA+4*t, 4), v(VA), 4096*t))
    for t in range(4): a('ds_read_b128 %s, %s offset:%d' % (v(SB+4*t, 4), v(VB), 4096*t))
    a.waitlg(0)
    a('s_cmp_eq_u32 s17, 0')
    a('s_cbranch_scc1 K2_NOSPEC2')
    for k in range(16): a.raw('  v_mov_b32 %s, %s' % (v(SB+k), v(MIRD+k)))
    a.label('K2_NOSPEC2')
    a('s_brev_b32 s35, 1')
    a('s_cmp_eq_u32 s27, 1')
    a('s_cbranch_scc1 K2_PRIM')
    for k in range(16): a.raw('  v_xor_b32 %s, s35, %s' % (v(FA+k), v(FA+k)))
    a.raw('  s_branch K2_CONJD')
    a.label('K2_PRIM')
    for k in range(16): a.raw('  v_xor_b32 %s, s35, %s' % (v(SB+k), v(SB+k)))
    a.label('K2_CONJD')
    a.nop(2)
    XR, XI, OR_, OI = 16, 32, 208, 224
    TMP = [4, 6, 14]
    for o in stage_AdataBG(XR, XI, FA, GR, GI): a(o)
    s1b = stage_AdataBG(OR_, OI, SB, GR, GI)
    a(s1b[0]); a(s1b[1])
    interleave(a, s1b[2:], twiddle_inplace(a, XR, XI, TC, TS, FA, TMP))
    interleave(a, stage_AGBdata(XR, XI, FA, GR, GI), twiddle_inplace(a, OR_, OI, TC, TS, SB, TMP))
    for o in stage_AGBdata(OR_, OI, SB, GR, GI): a(o)
    a('s_mov_b32 s34, 0xffff0000')
    U = 144
    for n, k in enumerate(range(0, 16, 2)):
        B = U + 16*(n & 1)
        Sr, Si, Dr, Di, Qr, Qi, Yr, Yi = B, B+2, B+4, B+6, B+8, B+10, B+12, B+14
        p = lambda b: v(b+k, 2)
        for h in range(2):
            a('v_lshlrev_b32 %s, 16, %s' % (v(Sr+h), v(SP+k+h)))
            a('v_and_b32 %s, s34, %s' % (v(Si+h), v(SP+k+h)))
            a('v_lshlrev_b32 %s, 16, %s' % (v(Dr+h), v(DP+k+h)))
            a('v_and_b32 %s, s34, %s' % (v(Di+h), v(DP+k+h)))
        N1 = 'neg_lo:[1,0,0] neg_hi:[1,0,0]'
        a('v_pk_mul_f32 %s, %s, %s neg_lo:[1,0] neg_hi:[1,0]' % (v(Qr, 2), p(SN), p(XR)))
        a('v_pk_mul_f32 %s, %s, %s neg_lo:[1,0] neg_hi:[1,0]' % (v(Qi, 2), p(SN), p(XI)))
        a('v_pk_mul_f32 %s, %s, %s' % (v(Yr, 2), v(Sr, 2), p(XR)))
        a('v_pk_mul_f32 %s, %s, %s' % (v(Yi, 2), v(Sr, 2), p(XI)))
        a('v_pk_fma_f32 %s, %s, %s, %s %s' % (v(Qr, 2), p(CS), p(OI), v(Qr, 2), N1))
        a('v_pk_fma_f32 %s, %s, %s, %s' % (v(Qi, 2), p(CS), p(OR_), v(Qi, 2)))
        a('v_pk_fma_f32 %s, %s, %s, %s %s' % (v(Yr, 2), v(Si, 2), p(XI), v(Yr, 2), N1))
        a('v_pk_fma_f32 %s, %s, %s, %s' % (v(Yi, 2), v(Si, 2), p(XR), v(Yi, 2)))
        a('v_pk_fma_f32 %s, %s, %s, %s' % (v(Yr, 2), v(Dr, 2), v(Qr, 2), v(Yr, 2)))
        a('v_pk_fma_f32 %s, %s, %s, %s' % (v(Yi, 2), v(Dr, 2), v(Qi, 2), v(Yi, 2)))
        a('v_pk_fma_f32 %s, %s, %s, %s %s' % (v(Yr, 2), v(Di, 2), v(Qi, 2), v(Yr, 2), N1))
        a('v_pk_fma_f32 %s, %s, %s, %s' % (v(Yi, 2), v(Di, 2), v(Qr, 2), v(Yi, 2)))
        a('v_cvt_pk_bf16_f32 %s, %s, -%s' % (v(SP+k), v(Yr), v(Yi)))
        a('v_cvt_pk_bf16_f32 %s, %s, -%s' % (v(SP+k+1), v(Yr+1), v(Yi+1)))
    for o in stage_AdataBG(XR, XI, SP, GR, GI): a(o)
    for o in twiddle_inplace(a, XR, XI, TC, TS, DP, TMP): a(o)
    P, PX = DP, FA
    for t in range(4):
        a('ds_write_b128 %s, %s offset:%d' % (v(VW), v(P+4*t, 4), 32*t))
    a.barrier()
    for t in range(4):
        a('ds_read_b128 %s, %s offset:%d' % (v(PX+4*t, 4), v(VR), 32*t))
    for o in stage_AdataBG(XR, XI, PX, GR, GI): a(o)
    a('s_lshl_b32 s40, %s, 17' % s(SW))
    a('s_lshl_b32 s41, %s, 6' % s(SJ))
    a('s_add_u32 s40, s40, s41')
    a('s_add_u32 s41, s40, 0x8000')
    a('s_add_u32 s42, s40, 0x10000')
    a('s_add_u32 s43, s40, 0x18000')
    a.nop(12)
    a('s_cmp_eq_u32 s27, 1')
    a('s_cbranch_scc1 K2_OUTP')
    for negi, lab in ((True, None), (False, 'K2_OUTP')):
        if lab: a.label(lab)
        cv = cvt_pairs(XR, XI, SP, negi)
        for q in range(4):
            for o in cv[4*q:4*q+4]: a(o)
            a('buffer_store_dwordx4 %s, %s, s[36:39], %s offen' % (v(SP+4*q, 4), v(VOUT), s(40+q)))
        a('s_endpgm')

def k2_mlp(a):
    a.reset()
    a('s_load_dwordx2 s[4:5], s[0:1], 0')
    a('s_load_dwordx4 s[12:15], s[0:1], 40')
    a('s_load_dwordx2 s[16:17], s[0:1], 56')
    a('s_load_dwordx2 s[8:9], s[0:1], 80')
    a('v_lshrrev_b32 v3, 6, v0')
    a('v_and_b32 v1, 63, v0')
    a('v_readfirstlane_b32 s3, v3')
    a('v_lshlrev_b32 v2, 4, v0')
    a('v_lshrrev_b32 v4, 1, v0')
    a('v_and_b32 v5, 1, v0')
    a('v_mul_u32_u24 v6, 7168, v4')
    a('v_lshlrev_b32 v5, 4, v5')
    a('v_add_u32 v6, v6, v5')
    a('v_lshlrev_b32 v7, 1, v4')
    srd(a, 20, 8, 9, 32768, WS_STAT)
    KEY = 8
    a('buffer_load_dwordx4 %s, v2, s[20:23], 0 offen offset:0' % v(KEY, 4)) if False else None
    a('s_mov_b32 s10, 16384')
    a('buffer_load_dwordx4 %s, v2, s[20:23], s10 offen' % v(KEY, 4))
    WB = 1024*3584*2
    srd(a, 24, 12, 13, WB); srd(a, 28, 14, 15, WB); srd(a, 32, 16, 17, WB)
    G, UP, DN = 16, 48, 80
    a('s_lshl_b32 s36, s2, 5')
    QS = 128*7168
    a('s_mov_b32 s37, s36')
    for q in range(8):
        a('buffer_load_dwordx4 %s, v6, s[24:27], s37 offen' % v(G+4*q, 4))
        if q < 7: a('s_add_u32 s37, s37, %d' % QS)
    a('v_max_u32 v8, v8, v9'); a('v_max3_u32 v8, v8, v10, v11')
    allmax_u32(a, 8, 9)
    a('s_lshl_b32 s11, s3, 2')
    a('v_mov_b32 v9, s11')
    a('ds_write_b32 v9, v8')
    a.barrier()
    a('v_mov_b32 v9, 0')
    a('ds_read_b128 v[12:15], v9')
    a('v_max_u32 v8, v12, v13'); a('v_max3_u32 v8, v8, v14, v15')
    a('v_readfirstlane_b32 s38, v8')
    a('s_and_b32 s39, s38, 0xffff'); a('s_sub_u32 s39, 2047, s39')
    srd(a, 44, 4, 5, 2048*1024*2)
    a('s_lshl_b32 s40, s39, 11')
    XV = 112
    for q in range(8):
        a('buffer_load_ushort %s, v7, s[44:47], s40 offen offset:%d' % (v(XV+q), 256*q))
    a('s_lshl_b32 s41, s39, 3')
    a('v_mov_b32 v9, 0')
    a('buffer_load_dwordx2 v[10:11], v9, s[20:23], s41 offen')
    a('s_mov_b32 s37, s36')
    for q in range(8):
        a('buffer_load_dwordx4 %s, v6, s[28:31], s37 offen' % v(UP+4*q, 4))
        if q < 7: a('s_add_u32 s37, s37, %d' % QS)
    a('s_lshl_b32 s37, s2, 15')
    for q in range(8):
        a('buffer_load_dwordx4 %s, v2, s[32:35], s37 offen' % v(DN+4*q, 4))
        if q < 7: a('s_add_u32 s37, s37, 4096')
    a('s_lshr_b32 s42, s38, 16')
    a('s_and_b32 s43, s42, 0x8000'); a('s_cmp_lg_u32 s43, 0')
    a('s_mov_b32 s49, 0xffff')
    a('s_cselect_b32 s43, 0x8000, s49')
    a('s_xor_b32 s42, s42, s43'); a('s_lshl_b32 s42, s42, 16')
    a('v_mov_b32 v12, s42')
    a('v_mul_f32 v12, %s, v12' % fbits(-1.4426950408889634))
    a('v_exp_f32 v12, v12'); a('v_add_f32 v12, 1.0, v12'); a('v_rcp_f32 v12, v12')
    a('v_cvt_pk_bf16_f32 v12, v12, v12'); a('v_lshlrev_b32 v13, 16, v12')
    a('v_mov_b32 v12, s39')
    a('s_cmp_eq_u32 s2, 0'); a('s_cselect_b32 s43, 1, 0'); a('s_cmp_eq_u32 s3, 0'); a('s_cselect_b32 s43, s43, 0')
    a('s_mov_b32 s42, %d' % (WS_SEL - WS_STAT))
    a('s_cmp_eq_u32 s43, 1'); a('s_cselect_b32 s42, s42, 0x7ff00000')
    a('v_mov_b32 v9, 0')
    a('s_mov_b64 exec, 1')
    a('buffer_store_dwordx2 v[12:13], v9, s[20:23], s42 offen')
    a('s_mov_b64 exec, -1')
    XS = 120
    for q in range(8):
        a('v_lshlrev_b32 %s, 16, %s' % (v(XV+q), v(XV+q)))
        a('v_fma_f32 %s, %s, v10, v11' % (v(XV+q), v(XV+q)))
    a('s_mov_b32 s48, 0xffff0000')
    for q in range(0, 8, 2):
        a('v_cvt_pk_bf16_f32 v12, %s, %s' % (v(XV+q), v(XV+q+1)))
        a('v_lshlrev_b32 %s, 16, v12' % v(XS+q))
        a('v_and_b32 %s, s48, v12' % v(XS+q+1))
    AG, AU, UT = 128, 136, 144
    def accum(W, ACC, first, xs_of, sg=False):
        for q in range(8):
            for d in range(4):
                T = UT + 2*((4*q+d) % 4)
                a('v_lshlrev_b32 %s, 16, %s' % (v(T), v(W+4*q+d)))
                a('v_and_b32 %s, s48, %s' % (v(T+1), v(W+4*q+d)))
                src, mod = xs_of(q)
                if q == 0:
                    a('v_pk_mul_f32 %s, %s, %s %s' % (v(ACC+2*d, 2), v(T, 2), src, mod(2)))
                else:
                    a('v_pk_fma_f32 %s, %s, %s, %s %s' % (v(ACC+2*d, 2), v(T, 2), src, v(ACC+2*d, 2), mod(3)))
    def xs_v(q):
        src = v(XS + (q & ~1), 2)
        if q & 1: return src, (lambda n: 'op_sel:[0,1]  op_sel_hi:[1,1]' if n == 2 else 'op_sel:[0,1,0] op_sel_hi:[1,1,1]')
        return src, (lambda n: 'op_sel_hi:[1,0]' if n == 2 else 'op_sel_hi:[1,0,1]')
    accum(G, AG, True, xs_v)
    accum(UP, AU, True, xs_v)
    for rot in (2, 4, 8):
        for k in range(16):
            a('v_add_f32_dpp %s, %s, %s row_ror:%d %s' % (v(AG+k), v(AG+k), v(AG+k), rot, DPPM))
    a('v_lshrrev_b32 v9, 4, v1'); a('v_lshlrev_b32 v9, 1, v9'); a('v_and_b32 v12, 1, v1'); a('v_add_u32 v9, v9, v12')
    a('s_lshl_b32 s11, s3, 3'); a('v_add_u32 v9, s11, v9'); a('v_lshlrev_b32 v9, 6, v9')
    a('s_mov_b32 s50, 0x00030003'); a('s_mov_b32 s51, 0x00030003')
    a('s_mov_b64 exec, s[50:51]')
    for q in range(4):
        a('ds_write_b128 v9, %s offset:%d' % (v(AG+4*q, 4), 64 + 16*q))
    a('s_mov_b64 exec, -1')
    a.barrier()
    a('v_bfe_u32 v9, v1, 3, 1'); a('v_lshlrev_b32 v9, 6, v9')
    a('v_bfe_u32 v12, v1, 4, 1'); a('v_lshlrev_b32 v12, 5, v12')
    a('v_and_b32 v13, 7, v1'); a('v_lshlrev_b32 v13, 2, v13')
    a('v_add3_u32 v9, v9, v12, v13')
    RD = 16
    for pr in range(16):
        a('ds_read_b32 %s, v9 offset:%d' % (v(RD+pr), 64 + 128*pr))
    for st in (8, 4, 2, 1):
        for k in range(st):
            a('v_add_f32 %s, %s, %s' % (v(RD+k), v(RD+k), v(RD+k+st)))
    a('v_mov_b32 v12, %s' % v(RD))
    a('v_permlane16_swap_b32 v12, %s' % v(RD))
    a('v_cvt_pk_bf16_f32 v13, v12, %s' % v(RD))
    a('v_lshlrev_b32 v12, 16, v13')
    a('v_and_b32 v13, s48, v13')
    a('v_mul_f32 v14, %s, v12' % fbits(-1.4426950408889634))
    a('v_exp_f32 v14, v14'); a('v_add_f32 v14, 1.0, v14'); a('v_rcp_f32 v14, v14')
    a('v_mul_f32 v12, v12, v14')
    a('v_cvt_pk_bf16_f32 v12, v12, v12'); a('v_lshlrev_b32 v12, 16, v12')
    a('v_mul_f32 v12, v12, v13')
    a('v_cvt_pk_bf16_f32 v12, v12, v12'); a('v_lshlrev_b32 v12, 16, v12')
    a('s_lshr_b32 s11, s3, 1')
    HS = 52
    for q in range(8):
        a('s_add_u32 s49, s11, %d' % (2*q))
        a('v_readlane_b32 %s, v12, s49' % s(HS+2*q))
    def hs_s(q):
        return s(HS+2*q, 2), (lambda n: 'op_sel_hi:[1,0]' if n == 2 else 'op_sel_hi:[1,0,1]')
    AY = 128
    accum(DN, AY, True, hs_s)
    a('v_and_b32 v9, 127, v0'); a('v_lshlrev_b32 v9, 5, v9')
    a('s_cmp_lt_u32 s3, 2')
    a('s_cbranch_scc1 K2_MLP_LO')
    a.raw('  ds_write_b128 v9, %s offset:4096' % v(AY, 4))
    a.raw('  ds_write_b128 v9, %s offset:4112' % v(AY+4, 4))
    a.raw('  s_waitcnt lgkmcnt(0)')
    a.raw('  s_barrier')
    a.raw('  s_endpgm')
    a.label('K2_MLP_LO')
    a.reset()
    a('s_barrier')
    a('ds_read_b128 v[16:19], v9 offset:4096')
    a('ds_read_b128 v[20:23], v9 offset:4112')
    srd(a, 44, 8, 9, 224*4096, WS_YP)
    a('s_lshl_b32 s37, s2, 12')
    for k in range(8):
        a('v_add_f32 %s, %s, %s' % (v(16+k), v(16+k), v(AY+k)))
    a('buffer_store_dwordx4 v[16:19], v9, s[44:47], s37 offen')
    a('buffer_store_dwordx4 v[20:23], v9, s[44:47], s37 offen offset:16')
    a('s_endpgm')

def k2(a, name):
    a.raw('.globl %s\n.p2align 8\n.type %s,@function\n%s:' % (name, name, name))
    a.reset()
    a('s_cmp_lt_u32 s2, %d' % NMLP); a('s_cbranch_scc1 K2_MLP')
    a('s_cmp_lt_u32 s2, %d' % (NMLP+256)); a('s_cbranch_scc1 K2_FFT')
    a('s_endpgm')
    a.label('K2_FFT'); k2_fft(a)
    a.label('K2_MLP'); k2_mlp(a)
```

```python
from common import *
from k2 import twiddle_inplace, interleave

SBASE = 16384
K3_LDS = SBASE + 4*5120
K3_VGPR = 256
NSP = 64
LOG2E = 1.4426950408889634

def k3_main(a):
    a.reset()
    SW, SI = 3, 10
    a('s_load_dwordx2 s[4:5], s[0:1], 0')
    a('s_load_dwordx2 s[6:7], s[0:1], 64')
    a('s_load_dwordx2 s[8:9], s[0:1], 80')
    VL, VO16 = 1, 2
    a('v_lshrrev_b32 v3, 6, v0')
    a('v_and_b32 %s, 63, v0' % v(VL))
    a('v_readfirstlane_b32 %s, v3' % s(SW))
    a('v_lshlrev_b32 %s, 4, %s' % (v(VO16), v(VL)))
    a('s_sub_u32 %s, s2, %d' % (s(SI), NSP))
    a('s_lshr_b32 s11, s10, 5'); a('s_lshl_b32 s11, s11, 7')
    a('s_and_b32 s12, s10, 31'); a('s_add_u32 s11, s11, s12')
    a('s_lshl_b32 s12, %s, 5' % s(SW)); a('s_add_u32 s11, s11, s12')
    srd(a, 20, 8, 9, 4 << 20, WS_Z2)
    srd(a, 12, 4, 5, 2048*1024*2)
    X = 144
    a('s_lshl_b32 s24, s11, 12')
    for q in range(4):
        a('buffer_load_dwordx4 %s, %s, s[12:15], s24 offen offset:%d' % (v(X+4*q, 4), v(VO16), 1024*q))
    a('s_lshl_b32 s18, %s, 12' % s(SW))
    a('s_lshl_b32 s19, s10, 14'); a('s_add_u32 s19, s19, s18')
    a('s_mov_b32 m0, s18')
    for q in range(4):
        a('buffer_load_dwordx4 %s, s[20:23], s19 offen offset:%d lds' % (v(VO16), 1024*q))
    a('s_add_u32 s26, s8, 0x%x' % WS_STAT); a('s_addc_u32 s27, s9, 0')
    a('s_lshl_b32 s25, s11, 4')
    a('s_load_dwordx4 s[28:31], s[26:27], s25')
    a('s_load_dword s32, s[26:27], %d' % (WS_SEL - WS_STAT))
    srd(a, 36, 6, 7, 2048*1024*2)
    COS, SIN, GR, GI, TC, TS = 16, 32, 48, 64, 80, 96
    gen_trig(a, VL, COS, SIN, TC, TS, 4, tscale=2.0**-21)
    gen_G(a, COS, SIN, GR, GI)
    VA, VSW, VSR = 8, 9, 10
    a('v_bfe_u32 v4, %s, 2, 2' % v(VL))
    a('v_lshlrev_b32 v5, 6, %s' % v(VL))
    a('v_xor_b32 v6, %s, v4' % s(SW)); a('v_lshlrev_b32 v6, 4, v6'); a('v_add_u32 %s, v5, v6' % v(VA))
    a('s_mul_i32 s33, %s, 5120' % s(SW)); a('s_add_u32 s33, s33, %d' % SBASE)
    a('v_and_b32 v4, 31, %s' % v(VL)); a('v_mul_u32_u24 v4, 80, v4')
    a('v_lshrrev_b32 v5, 5, %s' % v(VL)); a('v_lshlrev_b32 v5, 3, v5')
    a('v_add3_u32 %s, v4, v5, s33' % v(VSW))
    a('v_lshrrev_b32 v4, 2, %s' % v(VL)); a('v_mul_u32_u24 v4, 80, v4')
    a('v_and_b32 v5, 3, %s' % v(VL)); a('v_lshlrev_b32 v5, 4, v5')
    a('v_add3_u32 %s, v4, v5, s33' % v(VSR))
    C = 112
    for r in range(2):
        a('v_mov_b32 %s, %s' % (v(C+8*r), s(28+2*r)))
        a('v_mov_b32 %s, %s' % (v(C+8*r+2), s(29+2*r)))
        a('v_mul_f32 %s, %s, %s' % (v(C+8*r+4), fbits(-LOG2E), v(C+8*r)))
        a('v_mul_f32 %s, %s, %s' % (v(C+8*r+6), fbits(-LOG2E), v(C+8*r+2)))
    a('s_mov_b32 s34, 0xffff0000')
    E, Gt = 160, 192
    TA = 128
    gops = []
    for r in range(2):
        for k in range(8):
            e = E+16*r+2*k; g = Gt+16*r+2*k; T = TA + 4*(k & 3)
            gops += ['v_lshlrev_b32 %s, 16, %s' % (v(e), v(X+8*r+k)),
                     'v_and_b32 %s, s34, %s' % (v(e+1), v(X+8*r+k)),
                     'v_pk_fma_f32 %s, %s, %s, %s op_sel_hi:[1,0,0]' % (v(T, 2), v(e, 2), v(C+8*r+4, 2), v(C+8*r+6, 2)),
                     'v_pk_fma_f32 %s, %s, %s, %s op_sel_hi:[1,0,0]' % (v(g, 2), v(e, 2), v(C+8*r, 2), v(C+8*r+2, 2)),
                     'v_exp_f32 %s, %s' % (v(T), v(T)),
                     'v_exp_f32 %s, %s' % (v(T+1), v(T+1)),
                     'v_pk_add_f32 %s, %s, 1.0 op_sel_hi:[1,0]' % (v(T, 2), v(T, 2)),
                     'v_rcp_f32 %s, %s' % (v(T), v(T)),
                     'v_rcp_f32 %s, %s' % (v(T+1), v(T+1)),
                     'v_pk_mul_f32 %s, %s, %s' % (v(g, 2), v(g, 2), v(T, 2))]
    def zip2(ops, n):
        out = []
        for i in range(0, len(ops), 2*n):
            A, B = ops[i:i+n], ops[i+n:i+2*n]
            for x_, y_ in zip(A, B): out += [x_, y_]
        return out
    gops = zip2(gops, 10)
    half = len(gops)//2
    for o in gops[:half]: a(o)
    a.waitvm(4) if False else None
    FA = 224
    a.waitvm(0)
    a.barrier()
    for t in range(4): a('ds_read_b128 %s, %s offset:%d' % (v(FA+4*t, 4), v(VA), 4096*t))
    DR, DI = 16, 32
    interleave(a, stage_AdataBG(DR, DI, FA, GR, GI), gops[half:])
    TMP = [4, 6, 14]
    for o in twiddle_inplace(a, DR, DI, TC, TS, FA, TMP): a(o)
    for o in stage_AdataBG(DR, DI, FA, GR, GI): a(o)
    SP = 240
    for q in range(4):
        a('v_cvt_pk_bf16_f32 %s, %s, %s' % (v(SP), v(DR+4*q), v(DR+4*q+1)))
        a('v_cvt_pk_bf16_f32 %s, %s, %s' % (v(SP+1), v(DR+4*q+2), v(DR+4*q+3)))
        a('v_cvt_pk_bf16_f32 %s, -%s, -%s' % (v(SP+2), v(DI+4*q), v(DI+4*q+1)))
        a('v_cvt_pk_bf16_f32 %s, -%s, -%s' % (v(SP+3), v(DI+4*q+2), v(DI+4*q+3)))
        a('ds_write_b64 %s, %s offset:%d' % (v(VSW), v(SP, 2), 16*q))
        a('ds_write_b64 %s, %s offset:%d' % (v(VSW), v(SP+2, 2), 2560+16*q))
        SP = 244 if SP == 240 else 240
    SR = 224
    for r in range(2):
        for q in range(2):
            a('ds_read_b128 %s, %s offset:%d' % (v(SR+8*r+4*q, 4), v(VSR), 2560*r+1280*q))
    OUT = 144
    for r in range(2):
        for k in range(8):
            T = TA + 2*(k & 3)
            e = E+16*r+2*k; g = Gt+16*r+2*k
            a('v_lshlrev_b32 %s, 16, %s' % (v(T), v(SR+8*r+k)))
            a('v_and_b32 %s, s34, %s' % (v(T+1), v(SR+8*r+k)))
            a('v_pk_fma_f32 %s, %s, %s, %s' % (v(e, 2), v(T, 2), v(g, 2), v(e, 2)))
            a('v_cvt_pk_bf16_f32 %s, %s, %s' % (v(OUT+8*r+k), v(e), v(e+1)))
        a('s_lshl_b32 s35, s11, 1')
        if r: a('s_add_u32 s35, s35, 1')
        a('s_cmp_eq_u32 s35, s32')
        a('s_cbranch_scc1 K3_SKIP%d' % r)
        for q in range(2):
            a.raw('  buffer_store_dwordx4 %s, %s, s[36:39], s24 offen offset:%d' % (v(OUT+8*r+4*q, 4), v(VO16), 2048*r+1024*q))
        a.label('K3_SKIP%d' % r)
    a('s_endpgm')

def k3_special(a):
    a.reset()
    SW = 3
    a('s_load_dwordx2 s[4:5], s[0:1], 0')
    a('s_load_dwordx2 s[6:7], s[0:1], 64')
    a('s_load_dwordx2 s[8:9], s[0:1], 80')
    VL = 1
    a('v_lshrrev_b32 v3, 6, v0')
    a('v_and_b32 %s, 63, v0' % v(VL))
    a('v_readfirstlane_b32 %s, v3' % s(SW))
    a('s_add_u32 s26, s8, 0x%x' % WS_STAT); a('s_addc_u32 s27, s9, 0')
    a('s_load_dwordx2 s[32:33], s[26:27], %d' % (WS_SEL - WS_STAT))
    srd(a, 12, 8, 9, 224*4096, WS_YP)
    a('v_lshrrev_b32 v4, 2, v0'); a('v_lshlrev_b32 v4, 12, v4')
    a('v_and_b32 v5, 3, v0'); a('v_lshlrev_b32 v5, 4, v5'); a('v_add_u32 v4, v4, v5')
    a('s_lshl_b32 s16, s2, 6')
    Y = 112
    for q in range(4):
        a('s_add_u32 s17, s16, %d' % (q*64*4096))
        a('buffer_load_dwordx4 %s, v4, s[12:15], s17 offen' % v(Y+4*q, 4))
    srd(a, 20, 8, 9, 4 << 20, WS_Z2)
    srd(a, 40, 4, 5, 2048*1024*2)
    srd(a, 36, 6, 7, 2048*1024*2)
    a('s_cmp_eq_u32 %s, 0' % s(SW))
    a('s_cbranch_scc0 K3S_Y')
    a('s_lshr_b32 s18, s32, 1')
    a('s_lshr_b32 s19, s18, 7'); a('s_lshl_b32 s19, s19, 5'); a('s_and_b32 s24, s18, 31'); a('s_add_u32 s19, s19, s24')
    a('s_lshr_b32 s24, s18, 5'); a('s_and_b32 s24, s24, 3')
    a('v_bfe_u32 v4, %s, 2, 2' % v(VL)); a('v_xor_b32 v4, s24, v4'); a('v_lshlrev_b32 v4, 4, v4')
    a('v_lshlrev_b32 v5, 6, %s' % v(VL)); a('v_add_u32 v4, v4, v5')
    a('s_lshl_b32 s19, s19, 14')
    FA = 144
    for t in range(4):
        a('buffer_load_dwordx4 %s, v4, s[20:23], s19 offen' % v(FA+4*t, 4))
        if t < 3: a('s_add_u32 s19, s19, 4096')
    a('s_lshl_b32 s24, s32, 11'); a('s_lshl_b32 s25, s2, 5'); a('s_add_u32 s24, s24, s25')
    a('v_and_b32 v6, 15, %s' % v(VL)); a('v_lshlrev_b32 v7, 1, v6')
    a('buffer_load_ushort v160, v7, s[40:43], s24 offen')
    a('s_lshl_b32 s25, s32, 3')
    a('s_load_dwordx2 s[28:29], s[26:27], s25')
    COS, SIN, GR, GI, TC, TS = 16, 32, 48, 64, 80, 96
    gen_trig(a, VL, COS, SIN, TC, TS, 8, tscale=2.0**-21)
    gen_G(a, COS, SIN, GR, GI)
    DR, DI = 16, 32
    for o in stage_AdataBG(DR, DI, FA, GR, GI): a(o)
    for o in twiddle_inplace(a, DR, DI, TC, TS, FA, [4, 6, 14]): a(o)
    for o in stage_AdataBG(DR, DI, FA, GR, GI): a(o)
    a('v_and_b32 v4, 31, %s' % v(VL)); a('v_lshlrev_b32 v4, 7, v4')
    a('v_lshrrev_b32 v5, 5, %s' % v(VL)); a('v_lshlrev_b32 v5, 4, v5'); a('v_add_u32 v4, v4, v5')
    a.nop(12)
    a('s_bitcmp1_b32 s32, 0')
    a('s_cbranch_scc1 K3S_ODD')
    for q in range(4): a.raw('  ds_write_b128 v4, %s offset:%d' % (v(DR+4*q, 4), 1024+32*q))
    a.raw('  s_branch K3S_Y0')
    a.label('K3S_ODD')
    for k in range(16): a.raw('  v_sub_f32 %s, 0, %s' % (v(DI+k), v(DI+k)))
    for q in range(4): a.raw('  ds_write_b128 v4, %s offset:%d' % (v(DI+4*q, 4), 1024+32*q))
    a.label('K3S_Y0')
    a.raw('  s_waitcnt lgkmcnt(0)')
    a.label('K3S_Y')
    a.reset()
    a.waitvm(0)
    for k in range(4):
        a('v_add_f32 %s, %s, %s' % (v(Y+k), v(Y+k), v(Y+4+k)))
        a('v_add_f32 %s, %s, %s' % (v(Y+8+k), v(Y+8+k), v(Y+12+k)))
    for k in range(4): a('v_add_f32 %s, %s, %s' % (v(Y+k), v(Y+k), v(Y+8+k)))
    for rot in (4, 8):
        for k in range(4): a('v_add_f32_dpp %s, %s, %s row_ror:%d %s' % (v(Y+k), v(Y+k), v(Y+k), rot, DPPM))
    for sw in ('v_permlane16_swap_b32', 'v_permlane32_swap_b32'):
        for k in range(4): a('v_mov_b32 %s, %s' % (v(Y+4+k), v(Y+k)))
        for k in range(4): a('%s %s, %s' % (sw, v(Y+4+k), v(Y+k)))
        for k in range(4): a('v_add_f32 %s, %s, %s' % (v(Y+k), v(Y+k), v(Y+4+k)))
    a('v_lshlrev_b32 v4, 4, %s' % v(VL)); a('s_lshl_b32 s16, %s, 6' % s(SW)); a('v_add_u32 v4, s16, v4')
    a('s_mov_b64 exec, 15')
    a('ds_write_b128 v4, %s' % v(Y, 4))
    a('s_mov_b64 exec, -1')
    a.barrier()
    a('s_cmp_eq_u32 %s, 0' % s(SW))
    a('s_cbranch_scc1 K3S_FIN')
    a('s_endpgm')
    a.label('K3S_FIN')
    a('v_and_b32 v6, 15, %s' % v(VL)); a('v_lshlrev_b32 v7, 2, v6')
    for w in range(4): a('ds_read_b32 %s, v7 offset:%d' % (v(8+w), 64*w))
    a('s_lshl_b32 s16, s2, 6'); a('v_add_u32 v5, s16, v7')
    a('ds_read_b32 v12, v5 offset:1024')
    a('v_add_f32 v8, v8, v9'); a('v_add_f32 v10, v10, v11'); a('v_add_f32 v8, v8, v10')
    def rb(r):
        a('v_cvt_pk_bf16_f32 %s, %s, %s' % (v(r), v(r), v(r))); a('v_lshlrev_b32 %s, 16, %s' % (v(r), v(r)))
    rb(8)
    a('v_mul_f32 v8, s33, v8'); rb(8)
    a('v_lshlrev_b32 v160, 16, v160')
    a('v_mov_b32 v13, s29'); a('v_fma_f32 v13, v160, s28, v13'); rb(13)
    a('v_add_f32 v13, v13, v8'); rb(13)
    a('v_mul_f32 v14, %s, v13' % fbits(-LOG2E)); a('v_exp_f32 v14, v14'); a('v_add_f32 v14, 1.0, v14'); a('v_rcp_f32 v14, v14')
    a('v_mul_f32 v13, v13, v14'); rb(13)
    rb(12)
    a('v_mul_f32 v12, v12, v13'); rb(12)
    a('v_add_f32 v12, v12, v160')
    a('v_cvt_pk_bf16_f32 v12, v12, v12')
    a('v_lshlrev_b32 v7, 1, v6')
    a('s_lshl_b32 s24, s32, 11'); a('s_lshl_b32 s25, s2, 5'); a('s_add_u32 s24, s24, s25')
    a('s_mov_b64 exec, 0xffff')
    a('buffer_store_short v12, v7, s[36:39], s24 offen')
    a('s_endpgm')

def k3(a, name):
    a.raw('.globl %s\n.p2align 8\n.type %s,@function\n%s:' % (name, name, name))
    a.reset()
    a('s_cmp_lt_u32 s2, %d' % NSP); a('s_cbranch_scc1 K3_SPC')
    a('s_cmp_lt_u32 s2, %d' % (NSP+256)); a('s_cbranch_scc1 K3_MAIN')
    a('s_endpgm')
    a.label('K3_MAIN'); k3_main(a)
    a.label('K3_SPC'); k3_special(a)
```

```python
import sys
from common import *
import k1 as K1
def descriptor(name, vgpr, sgpr=80):
    acc = (vgpr + 3)//4*4
    return '''.p2align 6
.amdhsa_kernel %s
  .amdhsa_next_free_vgpr %d
  .amdhsa_next_free_sgpr %d
  .amdhsa_accum_offset %d
  .amdhsa_group_segment_fixed_size 0
  .amdhsa_kernarg_size 88
  .amdhsa_user_sgpr_count 2
  .amdhsa_user_sgpr_kernarg_segment_ptr 1
  .amdhsa_system_sgpr_workgroup_id_x 1
  .amdhsa_float_denorm_mode_32 3
.end_amdhsa_kernel
''' % (name, vgpr, sgpr, acc)
HEADER = open('recurrent_scan__spectral_gfnet__moe_arch_mod__prompt.s.ref').read().split('; Override')[0]
def build(kernels, path, stamps=False):
    STAMPS['on'] = stamps
    a = Asm()
    out = HEADER
    for name, fn, grid, block, lds, vg in kernels:
        out += '; @launch kernel=%s grid=(%d,1,1) block=(%d,1,1) lds=%d\n' % (name, grid, block, lds)
    out += '.amdgcn_target "amdgcn-amd-amdhsa--gfx950"\n.text\n'
    done = []
    for name, fn, grid, block, lds, vg in kernels:
        if name in done: continue
        done.append(name)
        fn(a, name)
    out += a.text()
    out += '.section .rodata,"a"\n'
    done = []
    for name, fn, grid, block, lds, vg in kernels:
        if name in done: continue
        done.append(name)
        out += descriptor(name, vg, 102 if stamps else 80)
    open(path, 'w').write(out)
    print('wrote', path, len(out), 'bytes; nops inserted', a.nops)
if __name__ == '__main__':
    ks = [('fft_k1_kernel', K1.k1, 392, 256, K1.K1_LDS, 240)]
    try:
        import k2 as K2, k3 as K3
        ks += [('fft_k2_kernel', K2.k2, 480, 256, K2.K2_LDS, K2.K2_VGPR), ('fft_k3_kernel', K3.k3, 320, 256, K3.K3_LDS, K3.K3_VGPR)]
    except ImportError as e:
        print('partial build', e)
    build(ks, sys.argv[1] if len(sys.argv) > 1 else 'out.s')
```

```python
import sys
sys.path.insert(0,'gen')
import build, k1 as K1, k2 as K2, k3 as K3
def kempty(a, name):
    a.raw('.globl %s\n.p2align 8\n.type %s,@function\n%s:' % (name, name, name))
    a.reset(); a('s_endpgm')
base = [('fft_k1_kernel', K1.k1, 392, 256, K1.K1_LDS, 240), ('fft_k2_kernel', K2.k2, 480, 256, K2.K2_LDS, K2.K2_VGPR), ('fft_k3_kernel', K3.k3, 320, 256, K3.K3_LDS, K3.K3_VGPR)]
E = ('empty_kernel', kempty, 256, 256, 0, 8)
build.build(base + [E], 'var_e1.s')
build.build(base + [E, E], 'var_e2.s')
build.build(base + [E, E, E, E], 'var_e4.s')
build.build([E] + base, 'var_pre.s')
build.build(base, 'var_base.s')
```

```python
from asmlib import *
import struct

def fbits(x): return '0x%08x' % struct.unpack('<I', struct.pack('<f', x))[0]

WS_Z1   = 0
WS_Z2   = 4 << 20
WS_COEF = 8 << 20
COEF_BYTES = 513 * 8192
WS_YP   = 13 << 20
WS_STAT = 14 << 20
WS_KEYS = WS_STAT + 16384
WS_SEL  = WS_KEYS + 4096
MFMA = 'v_mfma_f32_32x32x16_bf16'
DPPM = 'row_mask:0xf bank_mask:0xf'

def srd(a, sreg, base_lo, base_hi, nbytes, add=0):
    if add:
        a('s_add_u32 %s, %s, 0x%x' % (s(sreg), s(base_lo), add))
        a('s_addc_u32 %s, %s, 0' % (s(sreg+1), s(base_hi)))
    else:
        a('s_mov_b32 %s, %s' % (s(sreg), s(base_lo)))
        a('s_mov_b32 %s, %s' % (s(sreg+1), s(base_hi)))
    a('s_mov_b32 %s, 0x%x' % (s(sreg+2), nbytes))
    a('s_mov_b32 %s, 0x20000' % s(sreg+3))

def allsum(a, regs, tmps):
    for pat in ('quad_perm:[1,0,3,2]', 'quad_perm:[2,3,0,1]', 'row_half_mirror', 'row_mirror'):
        for r in regs:
            a('v_add_f32_dpp %s, %s, %s %s %s' % (v(r), v(r), v(r), pat, DPPM))
    for sw in ('v_permlane16_swap_b32', 'v_permlane32_swap_b32'):
        for r, t in zip(regs, tmps): a('v_mov_b32 %s, %s' % (v(t), v(r)))
        for r, t in zip(regs, tmps): a('%s %s, %s' % (sw, v(t), v(r)))
        for r, t in zip(regs, tmps): a('v_add_f32 %s, %s, %s' % (v(r), v(t), v(r)))

def allmax_u32(a, r, t):
    for pat in ('quad_perm:[1,0,3,2]', 'quad_perm:[2,3,0,1]', 'row_half_mirror', 'row_mirror'):
        a('v_max_u32_dpp %s, %s, %s %s %s' % (v(r), v(r), v(r), pat, DPPM))
    for sw in ('v_permlane16_swap_b32', 'v_permlane32_swap_b32'):
        a('v_mov_b32 %s, %s' % (v(t), v(r)))
        a('%s %s, %s' % (sw, v(t), v(r)))
        a('v_max_u32 %s, %s, %s' % (v(r), v(t), v(r)))

def gen_trig(a, vlane, COS, SIN, TC, TS, tmp, tscale=None):
    step, base = tmp, tmp+1
    a('v_and_b32 %s, 31, %s' % (v(step), v(vlane)))
    a('v_cvt_f32_u32 %s, %s' % (v(step), v(step)))
    a('v_lshrrev_b32 %s, 5, %s' % (v(base), v(vlane)))
    a('v_cvt_f32_u32 %s, %s' % (v(base), v(base)))
    a('v_mul_f32 %s, %s, %s' % (v(step), fbits(1/32), v(step)))
    a('v_mul_f32 %s, 4.0, %s' % (v(base), v(base)))
    a('v_mul_f32 %s, %s, %s' % (v(base), v(step), v(base)))
    for k in range(16):
        t, j = k >> 2, k & 3
        a('v_fmamk_f32 %s, %s, %s, %s' % (v(SIN+k), v(step), fbits(8*t+j), v(base)))
    if TC is not None:
        for k in range(16):
            a('v_mul_f32 %s, %s, %s' % (v(TS+k), fbits(1/32), v(SIN+k)))
        for k in range(16):
            a('v_cos_f32 %s, %s' % (v(TC+k), v(TS+k)))
        for k in range(16):
            a('v_sin_f32 %s, %s' % (v(TS+k), v(TS+k)))
        if tscale is not None:
            for k in range(16):
                a('v_mul_f32 %s, %s, %s' % (v(TC+k), fbits(tscale), v(TC+k)))
                a('v_mul_f32 %s, %s, %s' % (v(TS+k), fbits(tscale), v(TS+k)))
    for k in range(16):
        a('v_cos_f32 %s, %s' % (v(COS+k), v(SIN+k)))
    for k in range(16):
        a('v_sin_f32 %s, %s' % (v(SIN+k), v(SIN+k)))

def gen_G(a, COS, SIN, GR, GI):
    for k in range(16):
        a('v_cvt_pk_bf16_f32 %s, %s, %s' % (v(GR+k), v(COS+k), v(SIN+k)))
    for k in range(16):
        a('v_cvt_pk_bf16_f32 %s, -%s, %s' % (v(GI+k), v(SIN+k), v(COS+k)))

def twiddle_ops(DR, DI, TC, TS, PR, PI):
    ops = []
    for k in range(0, 16, 2):
        p = lambda b: v(b+k, 2)
        ops.append('v_pk_mul_f32 %s, %s, %s' % (p(PR), p(DR), p(TC)))
        ops.append('v_pk_mul_f32 %s, %s, %s' % (p(PI), p(DI), p(TC)))
        ops.append('v_pk_fma_f32 %s, %s, %s, %s' % (p(PR), p(DI), p(TS), p(PR)))
        ops.append('v_pk_fma_f32 %s, %s, %s, %s neg_lo:[1,0,0] neg_hi:[1,0,0]' % (p(PI), p(DR), p(TS), p(PI)))
    return ops

def cvt_pairs(PR, PI, OUT, negi=False):
    return ['v_cvt_pk_bf16_f32 %s, %s, %s%s' % (v(OUT+k), v(PR+k), '-' if negi else '', v(PI+k)) for k in range(16)]

def stage_AdataBG(D_R, D_I, X, GR, GI):
    ops = []
    for t in range(4):
        cr = '0' if t == 0 else v(D_R, 16); ci = '0' if t == 0 else v(D_I, 16)
        ops.append('%s %s, %s, %s, %s' % (MFMA, v(D_R, 16), v(X+4*t, 4), v(GR+4*t, 4), cr))
        ops.append('%s %s, %s, %s, %s' % (MFMA, v(D_I, 16), v(X+4*t, 4), v(GI+4*t, 4), ci))
    return ops
def stage_AGBdata(D_R, D_I, X, GR, GI):
    ops = []
    for t in range(4):
        cr = '0' if t == 0 else v(D_R, 16); ci = '0' if t == 0 else v(D_I, 16)
        ops.append('%s %s, %s, %s, %s' % (MFMA, v(D_R, 16), v(GR+4*t, 4), v(X+4*t, 4), cr))
        ops.append('%s %s, %s, %s, %s' % (MFMA, v(D_I, 16), v(GI+4*t, 4), v(X+4*t, 4), ci))
    return ops

EX_PLANE = 1168*4
EX_BYTES = 4*EX_PLANE

def ex_addrs(a, vlane, swave, VW, VR, exbase, tmp):
    a('v_and_b32 %s, 31, %s' % (v(tmp), v(vlane)))
    a('v_lshrrev_b32 %s, 5, %s' % (v(tmp+1), v(vlane)))
    a('v_lshlrev_b32 %s, 4, %s' % (v(tmp+1), v(tmp+1)))
    a('v_mul_u32_u24 %s, 144, %s' % (v(VW), v(tmp)))
    a('v_add_u32 %s, %s, %s' % (v(VW), v(tmp+1), v(VW)))
    a('s_mul_i32 s40, %s, %d' % (s(swave), EX_PLANE))
    a('s_add_u32 s40, s40, %d' % exbase)
    a('v_add_u32 %s, s40, %s' % (v(VW), v(VW)))
    a('v_and_b32 %s, 3, %s' % (v(VR), v(tmp)))
    a('v_mul_u32_u24 %s, %d, %s' % (v(VR), EX_PLANE, v(VR)))
    a('v_lshrrev_b32 %s, 2, %s' % (v(tmp), v(tmp)))
    a('v_mul_u32_u24 %s, 144, %s' % (v(tmp), v(tmp)))
    a('v_add3_u32 %s, %s, %s, %s' % (v(VR), v(VR), v(tmp), v(tmp+1)))
    a('s_mul_i32 s40, %s, %d' % (s(swave), 8*144))
    a('s_add_u32 s40, s40, %d' % exbase)
    a('v_add_u32 %s, s40, %s' % (v(VR), v(VR)))

def out_addr(a, vlane, VO, sblk, tmp):
    a('v_and_b32 %s, 31, %s' % (v(tmp), v(vlane)))
    a('v_lshrrev_b32 %s, 2, %s' % (v(VO), v(tmp)))
    a('v_lshlrev_b32 %s, 5, %s' % (v(VO), v(VO)))
    a('v_lshrrev_b32 %s, 5, %s' % (v(tmp+1), v(vlane)))
    a('v_add_u32 %s, %s, %s' % (v(VO), v(tmp+1), v(VO)))
    a('v_lshlrev_b32 %s, 14, %s' % (v(VO), v(VO)))
    a('s_lshr_b32 s40, %s, 2' % s(sblk))
    a('s_and_b32 s40, s40, 3')
    a('v_and_b32 %s, 3, %s' % (v(tmp), v(tmp)))
    a('v_xor_b32 %s, s40, %s' % (v(tmp), v(tmp)))
    a('v_lshlrev_b32 %s, 4, %s' % (v(tmp), v(tmp)))
    a('v_add_u32 %s, %s, %s' % (v(VO), v(tmp), v(VO)))

def fft_tail(a, P, PX, DR, DI, GR, GI, OUT, VW, VR, VO, srd_out, swave, sblk, negi=False):
    for t in range(4):
        a('ds_write_b128 %s, %s offset:%d' % (v(VW), v(P+4*t, 4), 32*t))
    a.barrier()
    stamp(a, 4)
    for t in range(4):
        a('ds_read_b128 %s, %s offset:%d' % (v(PX+4*t, 4), v(VR), 32*t))
    for o in stage_AdataBG(DR, DI, PX, GR, GI): a(o)
    stamp(a, 5)
    a('s_lshl_b32 s40, %s, 17' % s(swave))
    a('s_lshl_b32 s41, %s, 6' % s(sblk))
    a('s_add_u32 s40, s40, s41')
    a('s_add_u32 s41, s40, 0x8000')
    a('s_add_u32 s42, s40, 0x10000')
    a('s_add_u32 s43, s40, 0x18000')
    cv = cvt_pairs(DR, DI, OUT, negi)
    for q in range(4):
        for o in cv[4*q:4*q+4]: a(o)
        a('buffer_store_dwordx4 %s, %s, %s, %s offen' % (v(OUT+4*q, 4), v(VO), s(srd_out, 4), s(40+q)))


STAMPS = {'on': False, 'k': 0}
WS_STAMP = 15 << 20
def stamp(a, n):
    if STAMPS['on']:
        a('s_memrealtime s[%d:%d]' % (80+2*n, 81+2*n))
def fin(a, raw=False):
    if not STAMPS['on']:
        if raw: a.raw('  s_endpgm')
        else: a('s_endpgm')
        return
    R = a.raw
    R('  s_waitcnt vmcnt(0) lgkmcnt(0)')
    R('  s_memrealtime s[94:95]')
    R('  s_load_dwordx2 s[96:97], s[0:1], 80')
    R('  s_waitcnt lgkmcnt(0)')
    R('  s_add_u32 s96, s96, 0x%x' % WS_STAMP)
    R('  s_addc_u32 s97, s97, 0')
    R('  s_mov_b32 s98, 0x100000')
    R('  s_mov_b32 s99, 0x20000')
    R('  s_mov_b64 exec, 1')
    R('  v_lshrrev_b32 v0, 6, v0')
    R('  v_lshlrev_b32 v0, 5, v0')
    R('  s_lshl_b32 s100, s2, 7')
    R('  s_add_u32 s100, s100, %d' % (STAMPS['k']*65536*4))
    for n in range(8):
        R('  v_mov_b32 v%d, s%d' % (8+n, 80+2*n))
    R('  buffer_store_dwordx4 v[8:11], v0, s[96:99], s100 offen')
    R('  buffer_store_dwordx4 v[12:15], v0, s[96:99], s100 offen offset:16')
    R('  s_endpgm')
```

```python
from common import *

K1_LDS = 16384 + EX_BYTES
K1_LDS = max(K1_LDS, 33280)

def k1_fft(a):
    a.reset()
    SW = 3
    stamp(a, 0)
    a('s_load_dwordx2 s[4:5], s[0:1], 0')
    a('s_load_dwordx2 s[6:7], s[0:1], 32')
    a('s_load_dwordx2 s[8:9], s[0:1], 80')
    VL, VO16 = 1, 2
    a('v_lshrrev_b32 v3, 6, v0')
    a('v_and_b32 %s, 63, v0' % v(VL))
    a('v_readfirstlane_b32 %s, v3' % s(SW))
    a('v_lshlrev_b32 %s, 4, %s' % (v(VO16), v(VL)))
    a('s_lshr_b32 s10, s2, 5')
    a('s_lshl_b32 s10, s10, 7')
    a('s_and_b32 s11, s2, 31')
    a('s_add_u32 s10, s10, s11')
    a('s_lshl_b32 s11, %s, 5' % s(SW))
    a('s_add_u32 s10, s10, s11')
    a('s_lshl_b32 s11, s10, 12')
    srd(a, 12, 4, 5, 2048*1024*2)
    srd(a, 16, 6, 7, 2048)
    X, W = 136, 152
    for q in range(4):
        a('buffer_load_dwordx4 %s, %s, s[12:15], s11 offen offset:%d' % (v(X+4*q, 4), v(VO16), 1024*q))
    for q in range(2):
        a('buffer_load_dwordx4 %s, %s, s[16:19], 0 offen offset:%d' % (v(W+4*q, 4), v(VO16), 1024*q))
    srd(a, 20, 8, 9, 4 << 20, WS_Z1)
    srd(a, 24, 8, 9, 32768, WS_STAT)
    COS, SIN = 16, 32
    GR, GI = 48, 64
    FR, FI, NFI = 80, 88, 96
    TC, TS = 104, 120
    gen_trig(a, VL, COS, SIN, TC, TS, 4)
    gen_G(a, COS, SIN, GR, GI)
    for m in range(8):
        a('v_cvt_pk_bf16_f32 %s, %s, %s' % (v(FR+m), v(COS+2*m), v(COS+2*m+1)))
        a('v_cvt_pk_bf16_f32 %s, -%s, -%s' % (v(FI+m), v(SIN+2*m), v(SIN+2*m+1)))
        a('v_cvt_pk_bf16_f32 %s, %s, %s' % (v(NFI+m), v(SIN+2*m), v(SIN+2*m+1)))
    VW, VR, VOUT, VTR, VST = 8, 9, 10, 11, 12
    ex_addrs(a, VL, SW, VW, VR, 16384, 4)
    out_addr(a, VL, VOUT, 2, 4)
    a('v_lshrrev_b32 v4, 5, %s' % v(VL)); a('v_lshlrev_b32 v4, 8, v4')
    a('v_bfe_u32 v5, %s, 2, 2' % v(VL)); a('v_lshlrev_b32 v5, 6, v5')
    a('v_bfe_u32 v6, %s, 4, 1' % v(VL)); a('v_lshlrev_b32 v6, 5, v6')
    a('v_add3_u32 v4, v4, v5, v6')
    a('v_and_b32 v5, 3, %s' % v(VL)); a('v_lshlrev_b32 v5, 3, v5')
    a('s_lshl_b32 s28, %s, 12' % s(SW))
    a('v_add3_u32 %s, v4, v5, s28' % v(VTR))
    a('v_add_u32 %s, s28, %s' % (v(VST), v(VO16)))
    stamp(a, 6)
    E = 160
    A0, A1, T0, T1 = 4, 6, 14, 15
    a('s_mov_b32 s29, 0x3f803f80')
    a('s_mov_b32 s30, 0xffff0000')
    a('v_mov_b32 %s, 0' % v(A0)); a('v_mov_b32 %s, 0' % v(A1))
    for k in range(8):
        a('v_dot2c_f32_bf16 %s, s29, %s' % (v(A0), v(X+k)))
        a('v_dot2c_f32_bf16 %s, s29, %s' % (v(A1), v(X+8+k)))
    stamp(a, 1)
    for r in range(2):
        for k in range(8):
            a('v_lshlrev_b32 %s, 16, %s' % (v(E+16*r+2*k), v(X+8*r+k)))
            a('v_and_b32 %s, s30, %s' % (v(E+16*r+2*k+1), v(X+8*r+k)))
    allsum(a, [A0, A1], [T0, T1])
    MEAN0, MEAN1, MB0, MB1 = 224, 225, 226, 228
    a('v_mul_f32 %s, %s, %s' % (v(MEAN0), fbits(1/1024), v(A0)))
    a('v_mul_f32 %s, %s, %s' % (v(MEAN1), fbits(1/1024), v(A1)))
    a('v_cvt_pk_bf16_f32 %s, %s, %s' % (v(T0), v(MEAN0), v(MEAN1)))
    a('v_lshlrev_b32 %s, 16, %s' % (v(MB0), v(T0)))
    a('v_and_b32 %s, s30, %s' % (v(MB1), v(T0)))
    for r, MB in ((0, MB0), (1, MB1)):
        for k in range(8):
            p = v(E+16*r+2*k, 2)
            a('v_pk_add_f32 %s, %s, %s op_sel_hi:[1,0] neg_lo:[0,1] neg_hi:[0,1]' % (p, p, v(MB, 2)))
    for r, A in ((0, A0), (1, A1)):
        p = v(E+16*r, 2)
        a('v_pk_mul_f32 %s, %s, %s' % (v(A, 2), p, p))
    for k in range(1, 8):
        for r, A in ((0, A0), (1, A1)):
            p = v(E+16*r+2*k, 2)
            a('v_pk_fma_f32 %s, %s, %s, %s' % (v(A, 2), p, p, v(A, 2)))
    a('v_add_f32 %s, %s, %s' % (v(A0), v(A0), v(A0+1)))
    a('v_add_f32 %s, %s, %s' % (v(A1), v(A1), v(A1+1)))
    allsum(a, [A0, A1], [T0, T1])
    for A, MEAN, MB in ((A0, MEAN0, MB0), (A1, MEAN1, MB1)):
        a('v_sub_f32 %s, %s, %s' % (v(MEAN), v(MEAN), v(MB)))
        a('v_mul_f32 %s, %s, %s' % (v(A), fbits(1/1024), v(A)))
        a('v_fma_f32 %s, -%s, %s, %s' % (v(A), v(MEAN), v(MEAN), v(A)))
        a('v_max_f32 %s, 0, %s' % (v(A), v(A)))
    a('v_cvt_pk_bf16_f32 %s, %s, %s' % (v(T0), v(A0), v(A1)))
    a('v_lshlrev_b32 %s, 16, %s' % (v(A0), v(T0)))
    a('v_and_b32 %s, s30, %s' % (v(A1), v(T0)))
    a('v_add_f32 %s, %s, %s' % (v(A0), fbits(1e-5), v(A0)))
    a('v_add_f32 %s, %s, %s' % (v(A1), fbits(1e-5), v(A1)))
    a('v_cvt_pk_bf16_f32 %s, %s, %s' % (v(T0), v(A0), v(A1)))
    a('v_lshlrev_b32 %s, 16, %s' % (v(A0), v(T0)))
    a('v_and_b32 %s, s30, %s' % (v(A1), v(T0)))
    a('v_sqrt_f32 %s, %s' % (v(A0), v(A0)))
    a('v_sqrt_f32 %s, %s' % (v(A1), v(A1)))
    a('v_cvt_pk_bf16_f32 %s, %s, %s' % (v(T0), v(A0), v(A1)))
    a('v_lshlrev_b32 %s, 16, %s' % (v(A0), v(T0)))
    a('v_and_b32 %s, s30, %s' % (v(A1), v(T0)))
    S0 = 232
    a('v_rcp_f32 %s, %s' % (v(S0), v(A0)))
    a('v_rcp_f32 %s, %s' % (v(S0+2), v(A1)))
    a('v_mul_f32 %s, -%s, %s' % (v(S0+1), v(MB0), v(S0)) if False else 'v_mul_f32_e64 %s, -%s, %s' % (v(S0+1), v(MB0), v(S0)))
    a('v_mul_f32_e64 %s, -%s, %s' % (v(S0+3), v(MB1), v(S0+2)))
    XN = 192
    for r in range(2):
        for k in range(8):
            p = v(E+16*r+2*k, 2)
            a('v_pk_mul_f32 %s, %s, %s op_sel_hi:[1,0]' % (p, p, v(S0+2*r, 2)))
        for k in range(8):
            a('v_cvt_pk_bf16_f32 %s, %s, %s' % (v(XN+8*r+k), v(E+16*r+2*k), v(E+16*r+2*k+1)))
        for q in range(2):
            a('ds_write_b128 %s, %s offset:%d' % (v(VST), v(XN+8*r+4*q, 4), 2048*r+1024*q))
    XA = 208
    for rho in range(2):
        for tp in range(2):
            for ep in range(2):
                a('ds_read_b64_tr_b16 %s, %s offset:%d' % (v(XA+8*rho+4*tp+2*ep, 2), v(VTR), 2048*rho+1024*tp+512*ep))
    a('v_mov_b32 %s, 0' % v(A0)); a('v_mov_b32 %s, 0' % v(A1))
    for k in range(8):
        a('v_dot2c_f32_bf16 %s, %s, %s' % (v(A0), v(W+k), v(XN+k)))
        a('v_dot2c_f32_bf16 %s, %s, %s' % (v(A1), v(W+k), v(XN+8+k)))
    stamp(a, 2)
    DR, DI = 16, 32
    Xe, Xo = XA, XA+8
    seq = [(DR, Xe, FR, 0), (DI, Xe, FI, 0), (DR, Xe+4, FR+4, 1), (DI, Xe+4, FI+4, 1),
           (DR, Xo, NFI, 1), (DI, Xo, FR, 1), (DR, Xo+4, NFI+4, 1), (DI, Xo+4, FR+4, 1)]
    for D, A_, B_, acc in seq:
        a('%s %s, %s, %s, %s' % (MFMA, v(D, 16), v(A_, 4), v(B_, 4), v(D, 16) if acc else '0'))
    allsum(a, [A0, A1], [T0, T1])
    a('v_cvt_pk_bf16_f32 %s, %s, %s' % (v(T0), v(A0), v(A1)))
    a('v_and_b32 %s, 0xffff, %s' % (v(A0), v(T0)))
    a('v_lshrrev_b32 %s, 16, %s' % (v(A1), v(T0)))
    a('s_lshl_b32 s31, s10, 1')
    a('s_sub_u32 s32, 2047, s31')
    a('s_sub_u32 s33, 2046, s31')
    for A, sk in ((A0, 32), (A1, 33)):
        a('v_bfe_i32 %s, %s, 15, 1' % (v(T0), v(A)))
        a('v_and_b32 %s, 0x7fff, %s' % (v(T0), v(T0)))
        a('v_or_b32 %s, 0x8000, %s' % (v(T0), v(T0)))
        a('v_xor_b32 %s, %s, %s' % (v(A), v(T0), v(A)))
        a('v_lshlrev_b32 %s, 16, %s' % (v(A), v(A)))
        a('v_or_b32 %s, %s, %s' % (v(A), s(sk), v(A)))
    a('v_max_u32 %s, %s, %s' % (v(A0), v(A0), v(A1)))
    a('s_lshl_b32 s34, s10, 4')
    a('s_lshl_b32 s35, s10, 2')
    a('s_add_u32 s35, s35, 16384')
    a('v_mov_b32 %s, 0' % v(T0))
    a('s_mov_b64 exec, 1')
    a('buffer_store_dwordx4 %s, %s, s[24:27], s34 offen' % (v(S0, 4), v(T0)))
    a('buffer_store_dword %s, %s, s[24:27], s35 offen' % (v(A0), v(T0)))
    a('s_mov_b64 exec, -1')
    PR, PI, P = 160, 176, 192
    for o in twiddle_ops(DR, DI, TC, TS, PR, PI): a(o)
    for o in cvt_pairs(PR, PI, P): a(o)
    stamp(a, 3)
    fft_tail(a, P, 208, DR, DI, GR, GI, 192, VW, VR, VOUT, 20, SW, 2)
    fin(a)

def k1_prepass(a):
    a.reset()
    stamp(a, 0)
    a('s_load_dwordx2 s[4:5], s[0:1], 8')
    a('s_load_dwordx2 s[6:7], s[0:1], 16')
    a('s_load_dwordx2 s[8:9], s[0:1], 80')
    a('s_sub_u32 s3, s2, 256')
    a('s_lshr_b32 s10, s3, 4')
    a('s_and_b32 s11, s3, 15')
    a('v_and_b32 v1, 3, v0')
    a('v_lshrrev_b32 v2, 2, v0')
    a('v_lshrrev_b32 v3, 2, v2')
    a('v_and_b32 v4, 3, v2')
    a('v_lshlrev_b32 v4, 5, v4')
    a('v_add_u32 v3, v3, v4')
    a('v_mul_u32_u24 v3, 1026, v3')
    a('v_lshlrev_b32 v4, 4, v1')
    a('v_add_u32 v3, v3, v4')
    a('s_mul_i32 s12, s10, %d' % (128*1026))
    a('s_lshl_b32 s13, s11, 6')
    a('s_add_u32 s12, s12, s13')
    a('s_add_u32 s13, s12, %d' % (16*1026))
    a('s_add_u32 s14, s12, %d' % (1024*1026))
    a('s_add_u32 s15, s13, %d' % (1024*1026))
    WB = 2048*513*2
    srd(a, 16, 4, 5, WB); srd(a, 20, 6, 7, WB)
    srd(a, 24, 8, 9, COEF_BYTES, WS_COEF)
    L = 8
    def reg(tau, arr, row): return L + 16*tau + 8*arr + 4*row
    for tau in range(2):
        for row in range(2):
            so = 12 + tau + 2*row
            a('buffer_load_dwordx4 %s, v3, s[16:19], %s offen' % (v(reg(tau, 0, row), 4), s(so)))
            a('buffer_load_dwordx4 %s, v3, s[20:23], %s offen' % (v(reg(tau, 1, row), 4), s(so)))
    a('v_mul_u32_u24 v5, %d, v1' % (8*1040))
    a('v_lshlrev_b32 v6, 2, v2')
    a('v_add_u32 v5, v5, v6')
    a('s_mov_b32 s30, 0xffff0000')
    U = 48
    for tau in range(2):
        for d in range(4):
            srcs = [reg(tau, 0, 0)+d, reg(tau, 0, 1)+d, reg(tau, 1, 0)+d, reg(tau, 1, 1)+d]
            for n, sr in enumerate(srcs):
                a('v_lshlrev_b32 %s, 16, %s' % (v(U+2*n), v(sr)))
                a('v_and_b32 %s, s30, %s' % (v(U+2*n+1), v(sr)))
            R0, R1, I0, I1 = U, U+2, U+4, U+6
            SR, SI, DR_, DI_ = U+8, U+10, U+12, U+14
            a('v_pk_add_f32 %s, %s, %s' % (v(SR, 2), v(R0, 2), v(R1, 2)))
            a('v_pk_add_f32 %s, %s, %s' % (v(SI, 2), v(I0, 2), v(I1, 2)))
            a('v_pk_add_f32 %s, %s, %s neg_lo:[0,1] neg_hi:[0,1]' % (v(DR_, 2), v(R0, 2), v(R1, 2)))
            a('v_pk_add_f32 %s, %s, %s neg_lo:[0,1] neg_hi:[0,1]' % (v(DI_, 2), v(I0, 2), v(I1, 2)))
            O = U+16+4*(d & 1)
            for hi in range(2):
                a('v_cvt_pk_bf16_f32 %s, %s, %s' % (v(O+2*hi), v(SR+hi), v(SI+hi)))
                a('v_cvt_pk_bf16_f32 %s, %s, %s' % (v(O+2*hi+1), v(DR_+hi), v(DI_+hi)))
            for hi in range(2):
                e = 2*d + hi
                a('ds_write_b32 v5, %s offset:%d' % (v(O+2*hi), e*1040 + 256*tau))
                a('ds_write_b32 v5, %s offset:%d' % (v(O+2*hi+1), e*1040 + 512 + 256*tau))
    stamp(a, 1)
    a.barrier()
    stamp(a, 2)
    a('v_lshrrev_b32 v1, 6, v0')
    a('v_bfe_u32 v2, v0, 5, 1')
    a('v_and_b32 v3, 31, v0')
    a('v_mul_u32_u24 v4, 1040, v1')
    a('v_lshlrev_b32 v5, 9, v2')
    a('v_lshlrev_b32 v6, 4, v3')
    a('v_add3_u32 v4, v4, v5, v6')
    a('v_lshlrev_b32 v7, 13, v1')
    a('v_lshlrev_b32 v5, 10, v2')
    a('v_add3_u32 v7, v7, v5, v6')
    for q in range(8):
        a('ds_read_b128 %s, v4 offset:%d' % (v(8+4*q, 4), q*4*1040))
    a('s_lshl_b32 s12, s11, 18')
    a('s_lshr_b32 s13, s10, 1'); a('s_lshl_b32 s13, s13, 11'); a('s_add_u32 s12, s12, s13')
    a('s_and_b32 s13, s10, 1'); a('s_lshl_b32 s13, s13, 9'); a('s_add_u32 s12, s12, s13')
    a('s_cmp_eq_u32 s11, 0')
    a('s_cselect_b32 s14, 64, 0')
    a('v_mov_b32 v5, 0x7ff00000')
    a('v_cmp_gt_u32 vcc, s14, v0')
    a('v_cndmask_b32 v6, v7, v5, vcc')
    for q in range(8):
        a('buffer_store_dwordx4 %s, %s, s[24:27], s12 offen' % (v(8+4*q, 4), v(6 if q == 0 else 7)))
        if q < 7: a('s_add_u32 s12, s12, %d' % (4*8192))
    fin(a)

def k1_special(a):
    a.reset()
    stamp(a, 0)
    a('s_load_dwordx2 s[4:5], s[0:1], 8')
    a('s_load_dwordx2 s[6:7], s[0:1], 16')
    a('s_load_dwordx2 s[8:9], s[0:1], 80')
    a('s_sub_u32 s10, s2, 384')
    a('v_lshrrev_b32 v1, 7, v0')
    a('v_and_b32 v2, 127, v0')
    a('v_lshrrev_b32 v3, 2, v2')
    a('v_and_b32 v4, 3, v2')
    a('v_lshlrev_b32 v4, 5, v4')
    a('v_add_u32 v3, v3, v4')
    a('s_lshl_b32 s11, s10, 7')
    a('v_add_u32 v3, s11, v3')
    a('v_lshlrev_b32 v4, 10, v1')
    a('v_add_u32 v5, 1024, v3')
    a('v_sub_u32 v6, 2048, v3'); a('v_and_b32 v6, 2047, v6')
    a('v_sub_u32 v7, 1024, v3')
    for r in (3, 5, 6, 7):
        a('v_mul_u32_u24 %s, 1026, %s' % (v(8+r), v(r)))
        a('v_add_u32 %s, %s, v4' % (v(8+r), v(8+r)))
    WB = 2048*513*2
    srd(a, 16, 4, 5, WB); srd(a, 20, 6, 7, WB)
    srd(a, 24, 8, 9, COEF_BYTES, WS_COEF)
    for n, r in enumerate((3, 5, 6, 7)):
        a('buffer_load_ushort %s, %s, s[16:19], 0 offen' % (v(20+n), v(8+r)))
        a('buffer_load_ushort %s, %s, s[20:23], 0 offen' % (v(24+n), v(8+r)))
    for n in range(8):
        a('v_lshlrev_b32 %s, 16, %s' % (v(20+n), v(20+n)))
    a('v_add_f32 v28, v20, v22'); a('v_sub_f32 v29, v24, v26')
    a('v_add_f32 v30, v21, v23'); a('v_sub_f32 v31, v25, v27')
    a('v_add_f32 v32, v28, v30'); a('v_add_f32 v33, v29, v31')
    a('v_sub_f32 v34, v28, v30'); a('v_sub_f32 v35, v29, v31')
    for r in range(32, 36): a('v_mul_f32 %s, 0.5, %s' % (v(r), v(r)))
    a('v_cvt_pk_bf16_f32 v36, v32, v33')
    a('v_cvt_pk_bf16_f32 v37, v34, v35')
    a('v_lshlrev_b32 v8, 22, v1')
    a('v_lshlrev_b32 v9, 2, v2')
    a('v_add_u32 v8, v8, v9')
    a('s_lshr_b32 s12, s10, 1'); a('s_lshl_b32 s12, s12, 11')
    a('s_and_b32 s13, s10, 1'); a('s_lshl_b32 s13, s13, 9'); a('s_add_u32 s12, s12, s13')
    a('buffer_store_dword v36, v8, s[24:27], s12 offen')
    a('buffer_store_dword v37, v8, s[24:27], s12 offen offset:1024')
    fin(a)

def k1(a, name):
    STAMPS['k'] = 0
    a.raw('.globl %s\n.p2align 8\n.type %s,@function\n%s:' % (name, name, name))
    a.reset()
    a('s_cmp_lt_u32 s2, 256'); a('s_cbranch_scc1 K1_FFT')
    a('s_cmp_lt_u32 s2, 384'); a('s_cbranch_scc1 K1_PRE')
    a('s_cmp_lt_u32 s2, 392'); a('s_cbranch_scc1 K1_SPC')
    a('s_endpgm')
    a.label('K1_FFT'); k1_fft(a)
    a.label('K1_PRE'); k1_prepass(a)
    a.label('K1_SPC'); k1_special(a)
```

```python
from common import *

R0, R1, EXB = 0, 16384, 32768
K2_LDS = EXB + EX_BYTES
K2_VGPR = 256
NMLP = 224

def twiddle_inplace(a, DR, DI, TC, TS, OUT, tmps, negi=False, inter=None):
    inter = list(inter or [])
    ops = []
    for n, k in enumerate(range(0, 16, 2)):
        p = lambda b: v(b+k, 2)
        T = tmps[n % len(tmps)]
        ops.append('v_pk_mul_f32 %s, %s, %s' % (v(T, 2), p(DR), p(TC)))
        ops.append('v_pk_fma_f32 %s, %s, %s, %s' % (v(T, 2), p(DI), p(TS), v(T, 2)))
        ops.append('v_pk_mul_f32 %s, %s, %s' % (p(DI), p(DI), p(TC)))
        ops.append('v_pk_fma_f32 %s, %s, %s, %s neg_lo:[1,0,0] neg_hi:[1,0,0]' % (p(DI), p(DR), p(TS), p(DI)))
        ops.append('v_cvt_pk_bf16_f32 %s, %s, %s' % (v(OUT+k), v(T), v(DI+k)))
        ops.append('v_cvt_pk_bf16_f32 %s, %s, %s' % (v(OUT+k+1), v(T+1), v(DI+k+1)))
    return ops

def interleave(a, mf, va, lead=0):
    n = len(mf); per = (len(va) + n - 1)//n if n else 0
    i = 0
    for m in mf:
        a(m)
        for o in va[i:i+per]: a(o)
        i += per
    for o in va[i:]: a(o)

def k2_fft(a):
    a.reset()
    SW, SJ = 3, 10
    stamp(a, 0)
    a('s_load_dwordx2 s[8:9], s[0:1], 80')
    VL, VO16 = 1, 2
    a('v_lshrrev_b32 v3, 6, v0')
    a('v_and_b32 %s, 63, v0' % v(VL))
    a('v_readfirstlane_b32 %s, v3' % s(SW))
    a('v_lshlrev_b32 %s, 4, %s' % (v(VO16), v(VL)))
    a('s_sub_u32 %s, s2, %d' % (s(SJ), NMLP))
    a('s_lshr_b32 s11, s10, 5')
    a('s_and_b32 s12, s10, 31')
    a('s_sub_u32 s13, 7, s11'); a('s_lshl_b32 s13, s13, 5')
    a('s_sub_u32 s14, 32, s12'); a('s_and_b32 s14, s14, 31'); a('s_add_u32 s13, s13, s14')
    srd(a, 20, 8, 9, 4 << 20, WS_Z1)
    MIRD = 208
    a('s_or_b32 s15, s12, %s' % s(SW))
    a('s_cmp_eq_u32 s15, 0')
    a('s_cselect_b32 s16, 1, 0')
    a('s_and_b32 s17, s11, 3')
    a('s_cmp_lg_u32 s17, 0')
    a('s_cselect_b32 s17, s16, 0')
    a('s_cmp_eq_u32 s17, 0')
    a('s_cbranch_scc1 K2_NOSPEC')
    a.raw('  s_sub_u32 s18, 8, s11'); a.raw('  s_and_b32 s18, s18, 7'); a.raw('  s_lshl_b32 s18, s18, 19')
    a.raw('  v_lshlrev_b32 v4, 6, v1'); a.raw('  v_bfe_u32 v5, v1, 2, 2'); a.raw('  v_lshlrev_b32 v5, 4, v5'); a.raw('  v_add_u32 v4, v4, v5')
    for t in range(4):
        a.raw('  buffer_load_dwordx4 %s, v4, s[20:23], s18 offen' % v(MIRD+4*t, 4))
        if t < 3: a.raw('  s_add_u32 s18, s18, 4096')
    a.label('K2_NOSPEC')
    a('s_lshl_b32 s18, %s, 12' % s(SW))
    a('s_lshl_b32 s19, s10, 14'); a('s_add_u32 s19, s19, s18')
    a('s_add_u32 m0, s18, %d' % R0)
    for q in range(4):
        a('buffer_load_dwordx4 %s, s[20:23], s19 offen offset:%d lds' % (v(VO16), 1024*q))
    a('s_lshl_b32 s19, s13, 14'); a('s_add_u32 s19, s19, s18')
    a('s_add_u32 m0, s18, %d' % R1)
    for q in range(4):
        a('buffer_load_dwordx4 %s, s[20:23], s19 offen offset:%d lds' % (v(VO16), 1024*q))
    a('s_lshl_b32 s24, s11, 7'); a('s_lshl_b32 s25, %s, 5' % s(SW)); a('s_add_u32 s24, s24, s25'); a('s_add_u32 s24, s24, s12')
    a('s_sub_u32 s25, 1024, s24')
    a('s_cmp_lt_u32 s11, 4')
    a('s_cselect_b32 s26, s24, s25')
    a('s_cselect_b32 s27, 1, 0')
    srd(a, 28, 8, 9, COEF_BYTES, WS_COEF)
    SP, DP = 176, 192
    a('s_lshl_b32 s32, s26, 13'); a('s_add_u32 s33, s32, 4096')
    for t in range(4):
        so = 32 + (t >> 1)
        a('buffer_load_dwordx4 %s, %s, s[28:31], %s offen offset:%d' % (v(SP+4*t, 4), v(VO16), s(so), (t & 1)*2048))
        a('buffer_load_dwordx4 %s, %s, s[28:31], %s offen offset:%d' % (v(DP+4*t, 4), v(VO16), s(so), (t & 1)*2048 + 1024))
    srd(a, 36, 8, 9, 4 << 20, WS_Z2)
    COS, SIN, GR, GI, TC, TS, SN, CS = 16, 32, 48, 64, 80, 96, 112, 128
    gen_trig(a, VL, COS, SIN, TC, TS, 4)
    gen_G(a, COS, SIN, GR, GI)
    a('v_and_b32 v4, 31, %s' % v(VL)); a('v_lshrrev_b32 v5, 5, %s' % v(VL)); a('v_lshlrev_b32 v5, 7, v5'); a('v_add_u32 v4, v4, v5')
    a('v_cvt_f32_u32 v4, v4')
    a('s_cmp_eq_u32 s27, 1'); a('s_cselect_b32 s34, 0, %s' % fbits(0.5))
    a('v_mov_b32 v5, s34')
    a('v_fmac_f32 v5, %s, v4' % fbits(1/2048))
    for k in range(16):
        a('v_add_f32 %s, %s, v5' % (v(SN+k), fbits(((k & 3) + 8*(k >> 2))/64)))
    for k in range(16): a('v_cos_f32 %s, %s' % (v(CS+k), v(SN+k)))
    for k in range(16): a('v_sin_f32 %s, %s' % (v(SN+k), v(SN+k)))
    VW, VR, VOUT, VA, VB = 8, 9, 10, 11, 12
    ex_addrs(a, VL, SW, VW, VR, EXB, 4)
    out_addr(a, VL, VOUT, SJ, 4)
    a('v_bfe_u32 v4, %s, 2, 2' % v(VL))
    a('v_lshlrev_b32 v5, 6, %s' % v(VL))
    a('v_xor_b32 v6, %s, v4' % s(SW)); a('v_lshlrev_b32 v6, 4, v6'); a('v_add_u32 %s, v5, v6' % v(VA))
    a('s_sub_u32 s34, 3, %s' % s(SW)); a('s_sub_u32 s35, 4, %s' % s(SW)); a('s_and_b32 s35, s35, 3')
    a('s_cmp_eq_u32 s12, 0'); a('s_cselect_b32 s34, s35, s34')
    a('s_cmp_eq_u32 s16, 1'); a('s_cselect_b32 s35, %d, %d' % (R0, R1))
    a('v_xor_b32 v6, s34, v4'); a('v_lshlrev_b32 v6, 4, v6'); a('v_add3_u32 %s, v5, v6, s35' % v(VB))
    stamp(a, 6)
    a.waitvm(8)
    a.barrier()
    stamp(a, 1)
    FA, SB = 144, 160
    for t in range(4): a('ds_read_b128 %s, %s offset:%d' % (v(FA+4*t, 4), v(VA), 4096*t))
    for t in range(4): a('ds_read_b128 %s, %s offset:%d' % (v(SB+4*t, 4), v(VB), 4096*t))
    a.waitlg(0)
    a('s_cmp_eq_u32 s17, 0')
    a('s_cbranch_scc1 K2_NOSPEC2')
    for k in range(16): a.raw('  v_mov_b32 %s, %s' % (v(SB+k), v(MIRD+k)))
    a.label('K2_NOSPEC2')
    a('s_brev_b32 s35, 1')
    a('s_cmp_eq_u32 s27, 1')
    a('s_cbranch_scc1 K2_PRIM')
    for k in range(16): a.raw('  v_xor_b32 %s, s35, %s' % (v(FA+k), v(FA+k)))
    a.raw('  s_branch K2_CONJD')
    a.label('K2_PRIM')
    for k in range(16): a.raw('  v_xor_b32 %s, s35, %s' % (v(SB+k), v(SB+k)))
    a.label('K2_CONJD')
    a.nop(2)
    XR, XI, OR_, OI = 16, 32, 208, 224
    TMP = [4, 6, 14]
    for o in stage_AdataBG(XR, XI, FA, GR, GI): a(o)
    s1b = stage_AdataBG(OR_, OI, SB, GR, GI)
    a(s1b[0]); a(s1b[1])
    interleave(a, s1b[2:], twiddle_inplace(a, XR, XI, TC, TS, FA, TMP))
    interleave(a, stage_AGBdata(XR, XI, FA, GR, GI), twiddle_inplace(a, OR_, OI, TC, TS, SB, TMP))
    for o in stage_AGBdata(OR_, OI, SB, GR, GI): a(o)
    stamp(a, 2)
    a('s_mov_b32 s34, 0xffff0000')
    U = 144
    for n, k in enumerate(range(0, 16, 2)):
        B = U + 16*(n & 1)
        Sr, Si, Dr, Di, Qr, Qi, Yr, Yi = B, B+2, B+4, B+6, B+8, B+10, B+12, B+14
        p = lambda b: v(b+k, 2)
        for h in range(2):
            a('v_lshlrev_b32 %s, 16, %s' % (v(Sr+h), v(SP+k+h)))
            a('v_and_b32 %s, s34, %s' % (v(Si+h), v(SP+k+h)))
            a('v_lshlrev_b32 %s, 16, %s' % (v(Dr+h), v(DP+k+h)))
            a('v_and_b32 %s, s34, %s' % (v(Di+h), v(DP+k+h)))
        N1 = 'neg_lo:[1,0,0] neg_hi:[1,0,0]'
        a('v_pk_mul_f32 %s, %s, %s neg_lo:[1,0] neg_hi:[1,0]' % (v(Qr, 2), p(SN), p(XR)))
        a('v_pk_mul_f32 %s, %s, %s neg_lo:[1,0] neg_hi:[1,0]' % (v(Qi, 2), p(SN), p(XI)))
        a('v_pk_mul_f32 %s, %s, %s' % (v(Yr, 2), v(Sr, 2), p(XR)))
        a('v_pk_mul_f32 %s, %s, %s' % (v(Yi, 2), v(Sr, 2), p(XI)))
        a('v_pk_fma_f32 %s, %s, %s, %s %s' % (v(Qr, 2), p(CS), p(OI), v(Qr, 2), N1))
        a('v_pk_fma_f32 %s, %s, %s, %s' % (v(Qi, 2), p(CS), p(OR_), v(Qi, 2)))
        a('v_pk_fma_f32 %s, %s, %s, %s %s' % (v(Yr, 2), v(Si, 2), p(XI), v(Yr, 2), N1))
        a('v_pk_fma_f32 %s, %s, %s, %s' % (v(Yi, 2), v(Si, 2), p(XR), v(Yi, 2)))
        a('v_pk_fma_f32 %s, %s, %s, %s' % (v(Yr, 2), v(Dr, 2), v(Qr, 2), v(Yr, 2)))
        a('v_pk_fma_f32 %s, %s, %s, %s' % (v(Yi, 2), v(Dr, 2), v(Qi, 2), v(Yi, 2)))
        a('v_pk_fma_f32 %s, %s, %s, %s %s' % (v(Yr, 2), v(Di, 2), v(Qi, 2), v(Yr, 2), N1))
        a('v_pk_fma_f32 %s, %s, %s, %s' % (v(Yi, 2), v(Di, 2), v(Qr, 2), v(Yi, 2)))
        a('v_cvt_pk_bf16_f32 %s, %s, -%s' % (v(SP+k), v(Yr), v(Yi)))
        a('v_cvt_pk_bf16_f32 %s, %s, -%s' % (v(SP+k+1), v(Yr+1), v(Yi+1)))
    stamp(a, 3)
    for o in stage_AdataBG(XR, XI, SP, GR, GI): a(o)
    for o in twiddle_inplace(a, XR, XI, TC, TS, DP, TMP): a(o)
    P, PX = DP, FA
    for t in range(4):
        a('ds_write_b128 %s, %s offset:%d' % (v(VW), v(P+4*t, 4), 32*t))
    a.barrier()
    stamp(a, 4)
    for t in range(4):
        a('ds_read_b128 %s, %s offset:%d' % (v(PX+4*t, 4), v(VR), 32*t))
    for o in stage_AdataBG(XR, XI, PX, GR, GI): a(o)
    a('s_lshl_b32 s40, %s, 17' % s(SW))
    a('s_lshl_b32 s41, %s, 6' % s(SJ))
    a('s_add_u32 s40, s40, s41')
    a('s_add_u32 s41, s40, 0x8000')
    a('s_add_u32 s42, s40, 0x10000')
    a('s_add_u32 s43, s40, 0x18000')
    a.nop(12)
    stamp(a, 5)
    a('s_cmp_eq_u32 s27, 1')
    a('s_cbranch_scc1 K2_OUTP')
    for negi, lab in ((True, None), (False, 'K2_OUTP')):
        if lab: a.label(lab)
        cv = cvt_pairs(XR, XI, SP, negi)
        for q in range(4):
            for o in cv[4*q:4*q+4]: a(o)
            a('buffer_store_dwordx4 %s, %s, s[36:39], %s offen' % (v(SP+4*q, 4), v(VOUT), s(40+q)))
        fin(a)

def k2_mlp(a):
    a.reset()
    stamp(a, 0)
    a('s_load_dwordx2 s[4:5], s[0:1], 0')
    a('s_load_dwordx4 s[12:15], s[0:1], 40')
    a('s_load_dwordx2 s[16:17], s[0:1], 56')
    a('s_load_dwordx2 s[8:9], s[0:1], 80')
    a('v_lshrrev_b32 v3, 6, v0')
    a('v_and_b32 v1, 63, v0')
    a('v_readfirstlane_b32 s3, v3')
    a('v_lshlrev_b32 v2, 4, v0')
    a('v_lshrrev_b32 v4, 1, v0')
    a('v_and_b32 v5, 1, v0')
    a('v_mul_u32_u24 v6, 7168, v4')
    a('v_lshlrev_b32 v5, 4, v5')
    a('v_add_u32 v6, v6, v5')
    a('v_lshlrev_b32 v7, 1, v4')
    srd(a, 20, 8, 9, 32768, WS_STAT)
    KEY = 8
    a('buffer_load_dwordx4 %s, v2, s[20:23], 0 offen offset:0' % v(KEY, 4)) if False else None
    a('s_mov_b32 s10, 16384')
    a('buffer_load_dwordx4 %s, v2, s[20:23], s10 offen' % v(KEY, 4))
    WB = 1024*3584*2
    srd(a, 24, 12, 13, WB); srd(a, 28, 14, 15, WB); srd(a, 32, 16, 17, WB)
    G, UP, DN = 16, 48, 80
    a('s_and_b32 s69, s2, 7'); a('s_mul_i32 s69, s69, 28'); a('s_lshr_b32 s70, s2, 3'); a('s_add_u32 s69, s69, s70')
    a('s_lshl_b32 s36, s69, 5')
    QS = 128*7168
    a('s_mov_b32 s37, s36')
    for q in range(8):
        a('buffer_load_dwordx4 %s, v6, s[24:27], s37 offen' % v(G+4*q, 4))
        if q < 7: a('s_add_u32 s37, s37, %d' % QS)
    a('v_max_u32 v8, v8, v9'); a('v_max3_u32 v8, v8, v10, v11')
    allmax_u32(a, 8, 9)
    a('s_lshl_b32 s11, s3, 2')
    a('v_mov_b32 v9, s11')
    a('ds_write_b32 v9, v8')
    a.barrier()
    a('v_mov_b32 v9, 0')
    a('ds_read_b128 v[12:15], v9')
    a('v_max_u32 v8, v12, v13'); a('v_max3_u32 v8, v8, v14, v15')
    a('v_readfirstlane_b32 s38, v8')
    a('s_and_b32 s39, s38, 0xffff'); a('s_sub_u32 s39, 2047, s39')
    stamp(a, 1)
    srd(a, 44, 4, 5, 2048*1024*2)
    a('s_lshl_b32 s40, s39, 11')
    XV = 112
    for q in range(8):
        a('buffer_load_ushort %s, v7, s[44:47], s40 offen offset:%d' % (v(XV+q), 256*q))
    a('s_lshl_b32 s41, s39, 3')
    a('v_mov_b32 v9, 0')
    a('buffer_load_dwordx2 v[10:11], v9, s[20:23], s41 offen')
    a('s_mov_b32 s37, s36')
    for q in range(8):
        a('buffer_load_dwordx4 %s, v6, s[28:31], s37 offen' % v(UP+4*q, 4))
        if q < 7: a('s_add_u32 s37, s37, %d' % QS)
    a('s_lshl_b32 s37, s69, 15')
    for q in range(8):
        a('buffer_load_dwordx4 %s, v2, s[32:35], s37 offen' % v(DN+4*q, 4))
        if q < 7: a('s_add_u32 s37, s37, 4096')
    a('s_lshr_b32 s42, s38, 16')
    a('s_and_b32 s43, s42, 0x8000'); a('s_cmp_lg_u32 s43, 0')
    a('s_mov_b32 s49, 0xffff')
    a('s_cselect_b32 s43, 0x8000, s49')
    a('s_xor_b32 s42, s42, s43'); a('s_lshl_b32 s42, s42, 16')
    a('v_mov_b32 v12, s42')
    a('v_mul_f32 v12, %s, v12' % fbits(-1.4426950408889634))
    a('v_exp_f32 v12, v12'); a('v_add_f32 v12, 1.0, v12'); a('v_rcp_f32 v12, v12')
    a('v_cvt_pk_bf16_f32 v12, v12, v12'); a('v_lshlrev_b32 v13, 16, v12')
    a('v_mov_b32 v12, s39')
    a('s_cmp_eq_u32 s2, 0'); a('s_cselect_b32 s43, 1, 0'); a('s_cmp_eq_u32 s3, 0'); a('s_cselect_b32 s43, s43, 0')
    a('s_mov_b32 s42, %d' % (WS_SEL - WS_STAT))
    a('s_cmp_eq_u32 s43, 1'); a('s_cselect_b32 s42, s42, 0x7ff00000')
    a('v_mov_b32 v9, 0')
    a('s_mov_b64 exec, 1')
    a('buffer_store_dwordx2 v[12:13], v9, s[20:23], s42 offen')
    a('s_mov_b64 exec, -1')
    XS = 120
    for q in range(8):
        a('v_lshlrev_b32 %s, 16, %s' % (v(XV+q), v(XV+q)))
        a('v_fma_f32 %s, %s, v10, v11' % (v(XV+q), v(XV+q)))
    a('s_mov_b32 s48, 0xffff0000')
    for q in range(0, 8, 2):
        a('v_cvt_pk_bf16_f32 v12, %s, %s' % (v(XV+q), v(XV+q+1)))
        a('v_lshlrev_b32 %s, 16, v12' % v(XS+q))
        a('v_and_b32 %s, s48, v12' % v(XS+q+1))
    stamp(a, 2)
    AG, AU, UT = 128, 136, 144
    def accum(W, ACC, first, xs_of, sg=False):
        for q in range(8):
            for d in range(4):
                T = UT + 2*((4*q+d) % 4)
                a('v_lshlrev_b32 %s, 16, %s' % (v(T), v(W+4*q+d)))
                a('v_and_b32 %s, s48, %s' % (v(T+1), v(W+4*q+d)))
                src, mod = xs_of(q)
                if q == 0:
                    a('v_pk_mul_f32 %s, %s, %s %s' % (v(ACC+2*d, 2), v(T, 2), src, mod(2)))
                else:
                    a('v_pk_fma_f32 %s, %s, %s, %s %s' % (v(ACC+2*d, 2), v(T, 2), src, v(ACC+2*d, 2), mod(3)))
    def xs_v(q):
        src = v(XS + (q & ~1), 2)
        if q & 1: return src, (lambda n: 'op_sel:[0,1]  op_sel_hi:[1,1]' if n == 2 else 'op_sel:[0,1,0] op_sel_hi:[1,1,1]')
        return src, (lambda n: 'op_sel_hi:[1,0]' if n == 2 else 'op_sel_hi:[1,0,1]')
    accum(G, AG, True, xs_v)
    stamp(a, 3)
    accum(UP, AU, True, xs_v)
    stamp(a, 4)
    for rot in (2, 4, 8):
        for k in range(16):
            a('v_add_f32_dpp %s, %s, %s row_ror:%d %s' % (v(AG+k), v(AG+k), v(AG+k), rot, DPPM))
    a('v_lshrrev_b32 v9, 4, v1'); a('v_lshlrev_b32 v9, 1, v9'); a('v_and_b32 v12, 1, v1'); a('v_add_u32 v9, v9, v12')
    a('s_lshl_b32 s11, s3, 3'); a('v_add_u32 v9, s11, v9'); a('v_lshlrev_b32 v9, 6, v9')
    a('s_mov_b32 s50, 0x00030003'); a('s_mov_b32 s51, 0x00030003')
    a('s_mov_b64 exec, s[50:51]')
    for q in range(4):
        a('ds_write_b128 v9, %s offset:%d' % (v(AG+4*q, 4), 64 + 16*q))
    a('s_mov_b64 exec, -1')
    a.barrier()
    a('v_bfe_u32 v9, v1, 3, 1'); a('v_lshlrev_b32 v9, 6, v9')
    a('v_bfe_u32 v12, v1, 4, 1'); a('v_lshlrev_b32 v12, 5, v12')
    a('v_and_b32 v13, 7, v1'); a('v_lshlrev_b32 v13, 2, v13')
    a('v_add3_u32 v9, v9, v12, v13')
    RD = 16
    for pr in range(16):
        a('ds_read_b32 %s, v9 offset:%d' % (v(RD+pr), 64 + 128*pr))
    for st in (8, 4, 2, 1):
        for k in range(st):
            a('v_add_f32 %s, %s, %s' % (v(RD+k), v(RD+k), v(RD+k+st)))
    a('v_mov_b32 v12, %s' % v(RD))
    a('v_permlane16_swap_b32 v12, %s' % v(RD))
    a('v_cvt_pk_bf16_f32 v13, v12, %s' % v(RD))
    a('v_lshlrev_b32 v12, 16, v13')
    a('v_and_b32 v13, s48, v13')
    a('v_mul_f32 v14, %s, v12' % fbits(-1.4426950408889634))
    a('v_exp_f32 v14, v14'); a('v_add_f32 v14, 1.0, v14'); a('v_rcp_f32 v14, v14')
    a('v_mul_f32 v12, v12, v14')
    a('v_cvt_pk_bf16_f32 v12, v12, v12'); a('v_lshlrev_b32 v12, 16, v12')
    a('v_mul_f32 v12, v12, v13')
    a('v_cvt_pk_bf16_f32 v12, v12, v12'); a('v_lshlrev_b32 v12, 16, v12')
    a('s_lshr_b32 s11, s3, 1')
    HS = 52
    for q in range(8):
        a('s_add_u32 s49, s11, %d' % (2*q))
        a('v_readlane_b32 %s, v12, s49' % s(HS+2*q))
    def hs_s(q):
        return s(HS+2*q, 2), (lambda n: 'op_sel_hi:[1,0]' if n == 2 else 'op_sel_hi:[1,0,1]')
    stamp(a, 5)
    AY = 128
    accum(DN, AY, True, hs_s)
    stamp(a, 6)
    a('v_and_b32 v9, 127, v0'); a('v_lshlrev_b32 v9, 5, v9')
    a('s_cmp_lt_u32 s3, 2')
    a('s_cbranch_scc1 K2_MLP_LO')
    a.raw('  ds_write_b128 v9, %s offset:4096' % v(AY, 4))
    a.raw('  ds_write_b128 v9, %s offset:4112' % v(AY+4, 4))
    a.raw('  s_waitcnt lgkmcnt(0)')
    a.raw('  s_barrier')
    fin(a, True)
    a.label('K2_MLP_LO')
    a.reset()
    a('s_barrier')
    a('ds_read_b128 v[16:19], v9 offset:4096')
    a('ds_read_b128 v[20:23], v9 offset:4112')
    srd(a, 44, 8, 9, 224*4096, WS_YP)
    a('s_lshl_b32 s37, s2, 12')
    for k in range(8):
        a('v_add_f32 %s, %s, %s' % (v(16+k), v(16+k), v(AY+k)))
    a('buffer_store_dwordx4 v[16:19], v9, s[44:47], s37 offen')
    a('buffer_store_dwordx4 v[20:23], v9, s[44:47], s37 offen offset:16')
    fin(a)

def k2(a, name):
    STAMPS['k'] = 1
    a.raw('.globl %s\n.p2align 8\n.type %s,@function\n%s:' % (name, name, name))
    a.reset()
    a('s_cmp_lt_u32 s2, %d' % NMLP); a('s_cbranch_scc1 K2_MLP')
    a('s_cmp_lt_u32 s2, %d' % (NMLP+256)); a('s_cbranch_scc1 K2_FFT')
    a('s_endpgm')
    a.label('K2_FFT'); k2_fft(a)
    a.label('K2_MLP'); k2_mlp(a)
```

```python
from common import *
from k2 import twiddle_inplace, interleave

SBASE = 16384
K3_LDS = SBASE + 4*5120
K3_VGPR = 256
NSP = 64
LOG2E = 1.4426950408889634

def k3_main(a):
    a.reset()
    SW, SI = 3, 10
    stamp(a, 0)
    a('s_load_dwordx2 s[4:5], s[0:1], 0')
    a('s_load_dwordx2 s[6:7], s[0:1], 64')
    a('s_load_dwordx2 s[8:9], s[0:1], 80')
    VL, VO16 = 1, 2
    a('v_lshrrev_b32 v3, 6, v0')
    a('v_and_b32 %s, 63, v0' % v(VL))
    a('v_readfirstlane_b32 %s, v3' % s(SW))
    a('v_lshlrev_b32 %s, 4, %s' % (v(VO16), v(VL)))
    a('s_sub_u32 %s, s2, %d' % (s(SI), NSP))
    a('s_lshr_b32 s11, s10, 5'); a('s_lshl_b32 s11, s11, 7')
    a('s_and_b32 s12, s10, 31'); a('s_add_u32 s11, s11, s12')
    a('s_lshl_b32 s12, %s, 5' % s(SW)); a('s_add_u32 s11, s11, s12')
    srd(a, 20, 8, 9, 4 << 20, WS_Z2)
    srd(a, 12, 4, 5, 2048*1024*2)
    X = 144
    a('s_lshl_b32 s24, s11, 12')
    for q in range(4):
        a('buffer_load_dwordx4 %s, %s, s[12:15], s24 offen offset:%d' % (v(X+4*q, 4), v(VO16), 1024*q))
    a('s_lshl_b32 s18, %s, 12' % s(SW))
    a('s_lshl_b32 s19, s10, 14'); a('s_add_u32 s19, s19, s18')
    a('s_mov_b32 m0, s18')
    for q in range(4):
        a('buffer_load_dwordx4 %s, s[20:23], s19 offen offset:%d lds' % (v(VO16), 1024*q))
    a('s_add_u32 s26, s8, 0x%x' % WS_STAT); a('s_addc_u32 s27, s9, 0')
    a('s_lshl_b32 s25, s11, 4')
    a('s_load_dwordx4 s[28:31], s[26:27], s25')
    a('s_load_dword s32, s[26:27], %d' % (WS_SEL - WS_STAT))
    srd(a, 36, 6, 7, 2048*1024*2)
    COS, SIN, GR, GI, TC, TS = 16, 32, 48, 64, 80, 96
    gen_trig(a, VL, COS, SIN, TC, TS, 4, tscale=2.0**-21)
    gen_G(a, COS, SIN, GR, GI)
    VA, VSW, VSR = 8, 9, 10
    a('v_bfe_u32 v4, %s, 2, 2' % v(VL))
    a('v_lshlrev_b32 v5, 6, %s' % v(VL))
    a('v_xor_b32 v6, %s, v4' % s(SW)); a('v_lshlrev_b32 v6, 4, v6'); a('v_add_u32 %s, v5, v6' % v(VA))
    a('s_mul_i32 s33, %s, 5120' % s(SW)); a('s_add_u32 s33, s33, %d' % SBASE)
    a('v_and_b32 v4, 31, %s' % v(VL)); a('v_mul_u32_u24 v4, 80, v4')
    a('v_lshrrev_b32 v5, 5, %s' % v(VL)); a('v_lshlrev_b32 v5, 3, v5')
    a('v_add3_u32 %s, v4, v5, s33' % v(VSW))
    a('v_lshrrev_b32 v4, 2, %s' % v(VL)); a('v_mul_u32_u24 v4, 80, v4')
    a('v_and_b32 v5, 3, %s' % v(VL)); a('v_lshlrev_b32 v5, 4, v5')
    a('v_add3_u32 %s, v4, v5, s33' % v(VSR))
    stamp(a, 6)
    C = 112
    for r in range(2):
        a('v_mov_b32 %s, %s' % (v(C+8*r), s(28+2*r)))
        a('v_mov_b32 %s, %s' % (v(C+8*r+2), s(29+2*r)))
        a('v_mul_f32 %s, %s, %s' % (v(C+8*r+4), fbits(-LOG2E), v(C+8*r)))
        a('v_mul_f32 %s, %s, %s' % (v(C+8*r+6), fbits(-LOG2E), v(C+8*r+2)))
    a('s_mov_b32 s34, 0xffff0000')
    E, Gt = 160, 192
    TA = 128
    gops = []
    for r in range(2):
        for k in range(8):
            e = E+16*r+2*k; g = Gt+16*r+2*k; T = TA + 4*(k & 3)
            gops += ['v_lshlrev_b32 %s, 16, %s' % (v(e), v(X+8*r+k)),
                     'v_and_b32 %s, s34, %s' % (v(e+1), v(X+8*r+k)),
                     'v_pk_fma_f32 %s, %s, %s, %s op_sel_hi:[1,0,0]' % (v(T, 2), v(e, 2), v(C+8*r+4, 2), v(C+8*r+6, 2)),
                     'v_pk_fma_f32 %s, %s, %s, %s op_sel_hi:[1,0,0]' % (v(g, 2), v(e, 2), v(C+8*r, 2), v(C+8*r+2, 2)),
                     'v_exp_f32 %s, %s' % (v(T), v(T)),
                     'v_exp_f32 %s, %s' % (v(T+1), v(T+1)),
                     'v_pk_add_f32 %s, %s, 1.0 op_sel_hi:[1,0]' % (v(T, 2), v(T, 2)),
                     'v_rcp_f32 %s, %s' % (v(T), v(T)),
                     'v_rcp_f32 %s, %s' % (v(T+1), v(T+1)),
                     'v_pk_mul_f32 %s, %s, %s' % (v(g, 2), v(g, 2), v(T, 2))]
    def zip2(ops, n):
        out = []
        for i in range(0, len(ops), 2*n):
            A, B = ops[i:i+n], ops[i+n:i+2*n]
            for x_, y_ in zip(A, B): out += [x_, y_]
        return out
    gops = zip2(gops, 10)
    half = len(gops)//2
    for o in gops[:half]: a(o)
    a.waitvm(4) if False else None
    FA = 224
    stamp(a, 1)
    a.waitvm(0)
    a.barrier()
    for t in range(4): a('ds_read_b128 %s, %s offset:%d' % (v(FA+4*t, 4), v(VA), 4096*t))
    stamp(a, 2)
    DR, DI = 16, 32
    interleave(a, stage_AdataBG(DR, DI, FA, GR, GI), gops[half:])
    stamp(a, 3)
    TMP = [4, 6, 14]
    for o in twiddle_inplace(a, DR, DI, TC, TS, FA, TMP): a(o)
    for o in stage_AdataBG(DR, DI, FA, GR, GI): a(o)
    stamp(a, 4)
    SP = 240
    for q in range(4):
        a('v_cvt_pk_bf16_f32 %s, %s, %s' % (v(SP), v(DR+4*q), v(DR+4*q+1)))
        a('v_cvt_pk_bf16_f32 %s, %s, %s' % (v(SP+1), v(DR+4*q+2), v(DR+4*q+3)))
        a('v_cvt_pk_bf16_f32 %s, -%s, -%s' % (v(SP+2), v(DI+4*q), v(DI+4*q+1)))
        a('v_cvt_pk_bf16_f32 %s, -%s, -%s' % (v(SP+3), v(DI+4*q+2), v(DI+4*q+3)))
        a('ds_write_b64 %s, %s offset:%d' % (v(VSW), v(SP, 2), 16*q))
        a('ds_write_b64 %s, %s offset:%d' % (v(VSW), v(SP+2, 2), 2560+16*q))
        SP = 244 if SP == 240 else 240
    SR = 224
    for r in range(2):
        for q in range(2):
            a('ds_read_b128 %s, %s offset:%d' % (v(SR+8*r+4*q, 4), v(VSR), 2560*r+1280*q))
    stamp(a, 5)
    OUT = 144
    for r in range(2):
        for k in range(8):
            T = TA + 2*(k & 3)
            e = E+16*r+2*k; g = Gt+16*r+2*k
            a('v_lshlrev_b32 %s, 16, %s' % (v(T), v(SR+8*r+k)))
            a('v_and_b32 %s, s34, %s' % (v(T+1), v(SR+8*r+k)))
            a('v_pk_fma_f32 %s, %s, %s, %s' % (v(e, 2), v(T, 2), v(g, 2), v(e, 2)))
            a('v_cvt_pk_bf16_f32 %s, %s, %s' % (v(OUT+8*r+k), v(e), v(e+1)))
        a('s_lshl_b32 s35, s11, 1')
        if r: a('s_add_u32 s35, s35, 1')
        a('s_cmp_eq_u32 s35, s32')
        a('s_cbranch_scc1 K3_SKIP%d' % r)
        for q in range(2):
            a.raw('  buffer_store_dwordx4 %s, %s, s[36:39], s24 offen offset:%d' % (v(OUT+8*r+4*q, 4), v(VO16), 2048*r+1024*q))
        a.label('K3_SKIP%d' % r)
    fin(a)

def k3_special(a):
    a.reset()
    stamp(a, 0)
    SW = 3
    a('s_load_dwordx2 s[4:5], s[0:1], 0')
    a('s_load_dwordx2 s[6:7], s[0:1], 64')
    a('s_load_dwordx2 s[8:9], s[0:1], 80')
    VL = 1
    a('v_lshrrev_b32 v3, 6, v0')
    a('v_and_b32 %s, 63, v0' % v(VL))
    a('v_readfirstlane_b32 %s, v3' % s(SW))
    a('s_add_u32 s26, s8, 0x%x' % WS_STAT); a('s_addc_u32 s27, s9, 0')
    a('s_load_dwordx2 s[32:33], s[26:27], %d' % (WS_SEL - WS_STAT))
    srd(a, 12, 8, 9, 224*4096, WS_YP)
    a('v_lshrrev_b32 v4, 2, v0'); a('v_lshlrev_b32 v4, 12, v4')
    a('v_and_b32 v5, 3, v0'); a('v_lshlrev_b32 v5, 4, v5'); a('v_add_u32 v4, v4, v5')
    a('s_lshl_b32 s16, s2, 6')
    Y = 112
    for q in range(4):
        a('s_add_u32 s17, s16, %d' % (q*64*4096))
        a('buffer_load_dwordx4 %s, v4, s[12:15], s17 offen' % v(Y+4*q, 4))
    srd(a, 20, 8, 9, 4 << 20, WS_Z2)
    srd(a, 40, 4, 5, 2048*1024*2)
    srd(a, 36, 6, 7, 2048*1024*2)
    a('s_cmp_eq_u32 %s, 0' % s(SW))
    a('s_cbranch_scc0 K3S_Y')
    a('s_lshr_b32 s18, s32, 1')
    a('s_lshr_b32 s19, s18, 7'); a('s_lshl_b32 s19, s19, 5'); a('s_and_b32 s24, s18, 31'); a('s_add_u32 s19, s19, s24')
    a('s_lshr_b32 s24, s18, 5'); a('s_and_b32 s24, s24, 3')
    a('v_bfe_u32 v4, %s, 2, 2' % v(VL)); a('v_xor_b32 v4, s24, v4'); a('v_lshlrev_b32 v4, 4, v4')
    a('v_lshlrev_b32 v5, 6, %s' % v(VL)); a('v_add_u32 v4, v4, v5')
    a('s_lshl_b32 s19, s19, 14')
    FA = 144
    for t in range(4):
        a('buffer_load_dwordx4 %s, v4, s[20:23], s19 offen' % v(FA+4*t, 4))
        if t < 3: a('s_add_u32 s19, s19, 4096')
    a('s_lshl_b32 s24, s32, 11'); a('s_lshl_b32 s25, s2, 5'); a('s_add_u32 s24, s24, s25')
    a('v_and_b32 v6, 15, %s' % v(VL)); a('v_lshlrev_b32 v7, 1, v6')
    a('buffer_load_ushort v160, v7, s[40:43], s24 offen')
    a('s_lshl_b32 s25, s32, 3')
    a('s_load_dwordx2 s[28:29], s[26:27], s25')
    COS, SIN, GR, GI, TC, TS = 16, 32, 48, 64, 80, 96
    gen_trig(a, VL, COS, SIN, TC, TS, 8, tscale=2.0**-21)
    gen_G(a, COS, SIN, GR, GI)
    DR, DI = 16, 32
    for o in stage_AdataBG(DR, DI, FA, GR, GI): a(o)
    for o in twiddle_inplace(a, DR, DI, TC, TS, FA, [4, 6, 14]): a(o)
    for o in stage_AdataBG(DR, DI, FA, GR, GI): a(o)
    a('v_and_b32 v4, 31, %s' % v(VL)); a('v_lshlrev_b32 v4, 7, v4')
    a('v_lshrrev_b32 v5, 5, %s' % v(VL)); a('v_lshlrev_b32 v5, 4, v5'); a('v_add_u32 v4, v4, v5')
    a.nop(12)
    a('s_bitcmp1_b32 s32, 0')
    a('s_cbranch_scc1 K3S_ODD')
    for q in range(4): a.raw('  ds_write_b128 v4, %s offset:%d' % (v(DR+4*q, 4), 1024+32*q))
    a.raw('  s_branch K3S_Y0')
    a.label('K3S_ODD')
    for k in range(16): a.raw('  v_sub_f32 %s, 0, %s' % (v(DI+k), v(DI+k)))
    for q in range(4): a.raw('  ds_write_b128 v4, %s offset:%d' % (v(DI+4*q, 4), 1024+32*q))
    a.label('K3S_Y0')
    a.raw('  s_waitcnt lgkmcnt(0)')
    a.label('K3S_Y')
    a.reset()
    a.waitvm(0)
    for k in range(4):
        a('v_add_f32 %s, %s, %s' % (v(Y+k), v(Y+k), v(Y+4+k)))
        a('v_add_f32 %s, %s, %s' % (v(Y+8+k), v(Y+8+k), v(Y+12+k)))
    for k in range(4): a('v_add_f32 %s, %s, %s' % (v(Y+k), v(Y+k), v(Y+8+k)))
    for rot in (4, 8):
        for k in range(4): a('v_add_f32_dpp %s, %s, %s row_ror:%d %s' % (v(Y+k), v(Y+k), v(Y+k), rot, DPPM))
    for sw in ('v_permlane16_swap_b32', 'v_permlane32_swap_b32'):
        for k in range(4): a('v_mov_b32 %s, %s' % (v(Y+4+k), v(Y+k)))
        for k in range(4): a('%s %s, %s' % (sw, v(Y+4+k), v(Y+k)))
        for k in range(4): a('v_add_f32 %s, %s, %s' % (v(Y+k), v(Y+k), v(Y+4+k)))
    a('v_lshlrev_b32 v4, 4, %s' % v(VL)); a('s_lshl_b32 s16, %s, 6' % s(SW)); a('v_add_u32 v4, s16, v4')
    a('s_mov_b64 exec, 15')
    a('ds_write_b128 v4, %s' % v(Y, 4))
    a('s_mov_b64 exec, -1')
    a.barrier()
    a('s_cmp_eq_u32 %s, 0' % s(SW))
    a('s_cbranch_scc1 K3S_FIN')
    fin(a)
    a.label('K3S_FIN')
    a('v_and_b32 v6, 15, %s' % v(VL)); a('v_lshlrev_b32 v7, 2, v6')
    for w in range(4): a('ds_read_b32 %s, v7 offset:%d' % (v(8+w), 64*w))
    a('s_lshl_b32 s16, s2, 6'); a('v_add_u32 v5, s16, v7')
    a('ds_read_b32 v12, v5 offset:1024')
    a('v_add_f32 v8, v8, v9'); a('v_add_f32 v10, v10, v11'); a('v_add_f32 v8, v8, v10')
    def rb(r):
        a('v_cvt_pk_bf16_f32 %s, %s, %s' % (v(r), v(r), v(r))); a('v_lshlrev_b32 %s, 16, %s' % (v(r), v(r)))
    rb(8)
    a('v_mul_f32 v8, s33, v8'); rb(8)
    a('v_lshlrev_b32 v160, 16, v160')
    a('v_mov_b32 v13, s29'); a('v_fma_f32 v13, v160, s28, v13'); rb(13)
    a('v_add_f32 v13, v13, v8'); rb(13)
    a('v_mul_f32 v14, %s, v13' % fbits(-LOG2E)); a('v_exp_f32 v14, v14'); a('v_add_f32 v14, 1.0, v14'); a('v_rcp_f32 v14, v14')
    a('v_mul_f32 v13, v13, v14'); rb(13)
    rb(12)
    a('v_mul_f32 v12, v12, v13'); rb(12)
    a('v_add_f32 v12, v12, v160')
    a('v_cvt_pk_bf16_f32 v12, v12, v12')
    a('v_lshlrev_b32 v7, 1, v6')
    a('s_lshl_b32 s24, s32, 11'); a('s_lshl_b32 s25, s2, 5'); a('s_add_u32 s24, s24, s25')
    a('s_mov_b64 exec, 0xffff')
    a('buffer_store_short v12, v7, s[36:39], s24 offen')
    fin(a)

def k3(a, name):
    STAMPS['k'] = 2
    a.raw('.globl %s\n.p2align 8\n.type %s,@function\n%s:' % (name, name, name))
    a.reset()
    a('s_cmp_lt_u32 s2, %d' % NSP); a('s_cbranch_scc1 K3_SPC')
    a('s_cmp_lt_u32 s2, %d' % (NSP+256)); a('s_cbranch_scc1 K3_MAIN')
    a('s_endpgm')
    a.label('K3_MAIN'); k3_main(a)
    a.label('K3_SPC'); k3_special(a)
```

```python
import sys
sys.path.insert(0,'gen')
import importlib, build, k1 as K1, k2 as K2, k3 as K3
base = [('fft_k1_kernel', K1.k1, 392, 256, K1.K1_LDS, 240), ('fft_k2_kernel', K2.k2, 480, 256, K2.K2_LDS, K2.K2_VGPR), ('fft_k3_kernel', K3.k3, 320, 256, K3.K3_LDS, K3.K3_VGPR)]
build.build(base, 'out.s')
build.build(base, 'out_st.s', stamps=True)
```
